```python
import torch

def _softmax(x, axis=-1):
    return torch.softmax(x, dim=axis)
def _gelu(x):
    return torch.nn.functional.gelu(x, approximate="tanh")
def _silu(x):
    return torch.nn.functional.silu(x)
def _sigmoid(x):
    return torch.sigmoid(x)
def _layernorm(x, axis=-1, eps=1e-5):
    m = x.mean(dim=axis, keepdim=True)
    v = x.var(dim=axis, keepdim=True, unbiased=False)
    return (x - m) / torch.sqrt(v + eps)
def _scatter_add(tgt, idx, src, axis=0):
    return tgt.clone().index_add_(axis, idx, src)
def _segment_sum(src, seg, n):
    out = torch.zeros((n,) + src.shape[1:], dtype=src.dtype)
    return out.index_add_(0, seg, src)
def _pad(x, pw):
    flat = tuple(v for pair in reversed(pw) for v in pair)
    return torch.nn.functional.pad(x, flat)

kernel_name = 'parallel_sum__linear_kernel_hedgehog__dense_activation_relu__prompt'

def setup_inputs():

    _w = (lambda a: (lambda t: t.to(torch.bfloat16) if t.is_floating_point() else t)(torch.as_tensor(a)))
    def _A_setup():
        B, S, D, H = 1, 2048, 512, 32
        Dh = D // H
        return {
            "x": _w((lambda *s: torch.randn(*s, dtype=torch.bfloat16) * 0.05)(B, S, D)),
            "wqkv": _w((lambda *s: torch.randn(*s, dtype=torch.bfloat16) * 0.4)(D, 3 * D)),
            "w_phi": _w((lambda *s: torch.randn(*s, dtype=torch.bfloat16) * 0.4)(H, Dh, Dh) * (Dh ** -0.5)),
            "wo": _w((lambda *s: torch.randn(*s, dtype=torch.bfloat16) * 0.1)(D, D)),
        }
    _A_in = _A_setup()

    def _B_setup():
        B, S, D, Dff = 1, 2048, 512, 1792
        return {
            "x": _w((lambda *s: torch.randn(*s, dtype=torch.bfloat16) * 0.05)(B, S, D)),
            "w1": _w((lambda *s: torch.randn(*s, dtype=torch.bfloat16) * 0.05)(D, Dff)),
            "w2": _w((lambda *s: torch.randn(*s, dtype=torch.bfloat16) * 0.05)(Dff, D)),
        }
    _B_in = _B_setup()

    return {
        "A_x": _A_in["x"],
        "A_wqkv": _A_in["wqkv"],
        "A_w_phi": _A_in["w_phi"],
        "A_wo": _A_in["wo"],
        "B_x": _B_in["x"],
        "B_w1": _B_in["w1"],
        "B_w2": _B_in["w2"],
    }

def reference(A_x, A_wqkv, A_w_phi, A_wo, B_x, B_w1, B_w2):
    def _A_ref(x, wqkv, w_phi, wo):
        B, S, D = x.shape
        H = 32; Dh = D // H
        qkv = (lambda x, *d: x.permute(*d))((x @ wqkv).reshape(B, S, 3, H, Dh), 2, 0, 3, 1, 4)
        q, k, v = qkv[0], qkv[1], qkv[2]
        pq = torch.einsum("bhsd,hdf->bhsf", q, w_phi)
        pk = torch.einsum("bhsd,hdf->bhsf", k, w_phi)
        phi_q = torch.concatenate([_softmax(pq, axis=-1), _softmax(-pq, axis=-1)], axis=-1)
        phi_k = torch.concatenate([_softmax(pk, axis=-1), _softmax(-pk, axis=-1)], axis=-1)
        kv = torch.einsum("bhsf,bhsd->bhfd", phi_k, v)
        z  = torch.einsum("bhsf->bhf", phi_k)
        num = torch.einsum("bhqf,bhfd->bhqd", phi_q, kv)
        den = torch.einsum("bhqf,bhf->bhq", phi_q, z)[..., None] + 1e-6
        o = num / den
        return (lambda x, *d: x.permute(*d))(o, 0, 2, 1, 3).reshape(B, S, D) @ wo

    def _B_ref(x, w1, w2):
        h = torch.einsum("bsd,df->bsf", x, w1)
        zero = torch.zeros_like(h)
        h = torch.maximum(h, zero)
        return torch.einsum("bsf,fd->bsd", h, w2)

    x = A_x
    xn = _layernorm(x, axis=-1)
    return x + _A_ref(xn, A_wqkv, A_w_phi, A_wo) + _B_ref(xn, B_w1, B_w2)
```

```python
import re
NAME = "parallel_sum__linear_kernel_hedgehog__dense_activation_relu__prompt"
HEADER_COMMENT = open("cdna_kernels/%s.s.ref" % NAME).read().split("; Override launch")[0]

_REG = re.compile(r"^(-|abs\()?([vsa])(?:(\d+)|\[(\d+):(\d+)\])\)?$")
def regs_of(tok):
    tok = tok.strip()
    if tok.startswith("-"): tok = tok[1:]
    if tok.startswith("abs(") or tok.startswith("|"):
        tok = tok.replace("abs(", "").replace(")", "").replace("|", "")
    if tok == "vcc": return {("s", 106), ("s", 107)}
    if tok == "exec": return {("s", 126), ("s", 127)}
    if tok == "m0": return {("s", 124)}
    if tok == "exec_lo": return {("s", 126)}
    if tok == "exec_hi": return {("s", 127)}
    if tok == "vcc_lo": return {("s", 106)}
    if tok == "vcc_hi": return {("s", 107)}
    m = re.match(r"^([vsa])(?:(\d+)|\[(\d+):(\d+)\])$", tok)
    if not m: return set()
    f = m.group(1)
    if m.group(2) is not None: return {(f, int(m.group(2)))}
    return {(f, i) for i in range(int(m.group(3)), int(m.group(4)) + 1)}

TRANS = ("v_exp_f32", "v_log_f32", "v_rcp_f32", "v_rsq_f32", "v_sqrt_f32", "v_sin_f32", "v_cos_f32")

class Ins:
    __slots__ = ("text", "mn", "kind", "dst", "src", "passes", "srcc", "n", "dpp", "wide")
    def __init__(self, text):
        self.text = text
        t = text.split(";")[0].strip()
        parts = t.split(None, 1)
        self.mn = mn = parts[0]
        rest = parts[1] if len(parts) > 1 else ""
        ops = [o.strip() for o in re.split(r",(?![^\[]*\])", rest)] if rest else []
        mods = ""
        if ops:
            sp = ops[-1].split(None, 1)
            ops[-1] = sp[0]
            if len(sp) > 1: mods = sp[1]
        self.dst = set(); self.src = set(); self.passes = 0; self.srcc = set(); self.n = 1
        self.dpp = ("dpp" in mn) or ("row_" in mods) or ("quad_perm" in mods)
        self.wide = False
        R = [regs_of(o) for o in ops]
        if mn.endswith(":"): self.kind = "label"
        elif mn.startswith("v_mfma"):
            self.kind = "mfma"; self.dst = R[0]; self.src = R[1] | R[2]; self.srcc = R[3]
            self.passes = 8 if "32x32" in mn else 4
        elif mn.startswith("v_cmp"):
            self.kind = "valu"; self.dst = R[0]; self.src = set().union(*R[1:])
        elif mn.startswith("v_readfirstlane") or mn.startswith("v_readlane"):
            self.kind = "rdlane"; self.dst = R[0]; self.src = set().union(*R[1:])
        elif mn.startswith("v_permlane") or mn.startswith("v_swap"):
            self.kind = "permlane"; self.dst = R[0] | R[1]; self.src = R[0] | R[1]
        elif mn.startswith("v_"):
            self.kind = "trans" if any(mn.startswith(x) for x in TRANS) else "valu"
            self.dst = R[0]; self.src = set().union(*R[1:]) if len(R) > 1 else set()
            if mn.startswith(("v_fmac", "v_dot2c", "v_mac")): self.src |= R[0]
            if mn.startswith(("v_add_co", "v_addc_co", "v_sub_co")): self.dst |= R[1]
            if mn.startswith("v_cndmask") and len(ops) == 3: self.src |= regs_of("vcc")
            if self.dpp or "sdwa" in mn: self.src |= R[0]
            if "d16" in mn: self.src |= R[0]
        elif mn.startswith("ds_read") or mn.startswith("ds_bpermute") or mn.startswith("ds_swizzle") or mn.endswith("_rtn_u32") or mn.endswith("_rtn_f32"):
            self.kind = "ds"; self.dst = R[0]; self.src = set().union(*R[1:])
        elif mn.startswith("ds_"):
            self.kind = "ds"; self.src = set().union(*R)
        elif mn.startswith("buffer_load") or mn.startswith("global_load"):
            self.kind = "vmem"
            if " lds" in (" " + mods): self.src = set().union(*R)
            else:
                self.dst = R[0]; self.src = set().union(*R[1:])
                if "d16" in mn: self.src |= R[0]
        elif mn.startswith("buffer_store") or mn.startswith("global_store"):
            self.kind = "vmem"; self.src = set().union(*R); self.wide = ("x4" in mn or "x3" in mn)
            self.srcc = R[0] if mn.startswith("buffer") else R[1]
        elif mn.startswith("buffer_atomic") or mn.startswith("global_atomic"):
            self.kind = "vmem"; self.src = set().union(*R)
            if "sc0" in mods: self.dst = R[0]
        elif mn.startswith(("buffer_wbl2", "buffer_inv")): self.kind = "vmem"
        elif mn == "s_nop": self.kind = "nop"; self.n = int(ops[0], 0) + 1
        elif mn == "s_waitcnt": self.kind = "wait"
        elif mn.startswith("s_load") or mn.startswith("s_memtime") or mn.startswith("s_memrealtime"):
            self.kind = "smem"; self.dst = R[0]; self.src = set().union(*R[1:]) if len(R) > 1 else set()
        elif mn.startswith(("s_cbranch", "s_branch", "s_barrier", "s_endpgm", "s_sleep", "s_setprio")): self.kind = "ctl"
        elif mn.startswith("s_cmp") or mn.startswith("s_bitcmp"): self.kind = "salu"; self.src = set().union(*R)
        elif mn.startswith("s_"):
            self.kind = "salu"; self.dst = R[0] if R else set(); self.src = set().union(*R[1:]) if len(R) > 1 else set()
            if "saveexec" in mn: self.dst |= regs_of("exec")
        else:
            raise ValueError("unknown instr " + text)

def need_ws(p, c):
    n = 0
    isv = lambda k: k in ("valu", "trans", "permlane", "rdlane")
    vd = {r for r in p.dst if r[0] in "va"}; sd = {r for r in p.dst if r[0] == "s"}
    if p.kind == "mfma":
        big = {4: 8, 8: 12}[p.passes]
        if c.kind == "mfma":
            if vd & c.src: n = max(n, big)
            if vd & c.srcc and not (c.srcc == p.dst and c.passes == p.passes): n = max(n, {4: 6, 8: 10}[p.passes])
            if vd & c.dst and not (vd & c.srcc): n = max(n, big)
        elif isv(c.kind) or c.kind in ("ds", "vmem"):
            if vd & (c.src | c.dst): n = max(n, big)
        if isv(c.kind) and (p.srcc & c.dst): n = max(n, {4: 3, 8: 7}[p.passes])
    if isv(p.kind):
        if c.kind == "mfma" and vd & (c.src | c.srcc): n = max(n, 2)
        if c.dpp and vd & c.src: n = max(n, 2)
        if c.kind == "permlane" and vd & c.src: n = max(n, 2)
        if c.kind == "rdlane" and vd & c.src: n = max(n, 1)
        if p.kind == "trans" and isv(c.kind) and c.kind != "trans" and vd & (c.src): n = max(n, 1)
        if p.kind == "trans" and c.kind in ("mfma",) and vd & (c.src|c.srcc): n = max(n, 2)
        if "sdwa" in p.mn and isv(c.kind) and vd & (c.src | c.dst): n = max(n, 1)
        if sd:
            if c.kind == "vmem" and sd & c.src: n = max(n, 5)
            if isv(c.kind) and sd & c.src: n = max(n, 4 if c.kind == "rdlane" else 2)
            if c.kind in ("salu", "ctl", "smem") and sd & c.src: n = max(n, 1)
            if ("s", 126) in sd and (c.kind == "mfma" or c.dpp): n = max(n, 5)
    if p.kind == "vmem" and p.wide and (p.srcc & c.dst): n = max(n, 2)
    if p.kind == "salu" and ("s", 124) in p.dst and c.kind == "vmem": n = max(n, 1)
    if p.kind == "salu" and ("s", 126) in p.dst and c.dpp: n = max(n, 1)
    return n

class Asm:
    def __init__(self, name=""):
        self.ins = []; self.name = name
        self.vm = []
        self.lg = []
        self.check = True
    _lbl = [0]
    def label(self, base="L"):
        Asm._lbl[0] += 1
        return "%s_%d" % (base, Asm._lbl[0])
    def __call__(self, s):
        for l in s.split("\n"):
            l = l.strip()
            if not l or l.startswith(";"): continue
            self.emit(Ins(l))
    def emit(self, c):
        if c.kind not in ("label", "nop", "wait"):
            dist = 0; need = 0
            for p in reversed(self.ins[-24:]):
                if p.kind == "label": continue
                w = need_ws(p, c)
                if w > dist: need = max(need, w - dist)
                dist += p.n
                if dist >= 12: break
            if need > 0:
                self.ins.append(Ins("s_nop %d" % (need - 1)))
        if self.check:
            touched = c.src | c.dst | c.srcc
            for q, nm in ((self.vm, "vmcnt"), (self.lg, "lgkmcnt")):
                for d, t in q:
                    if d & touched and not (c.kind == "vmem" and nm == "vmcnt" and not (d & (c.src|c.srcc)) and "d16" in c.mn):
                        raise RuntimeError("[%s] %s touches regs of outstanding %s op '%s'" % (self.name, c.text, nm, t))
            if c.kind == "vmem": self.vm.append((set(c.dst), c.text))
            if c.kind in ("ds", "smem"): self.lg.append((set(c.dst), c.text))
            if c.kind == "wait":
                m = re.search(r"vmcnt\((\d+)\)", c.text)
                if m:
                    n = int(m.group(1)); self.vm = self.vm[len(self.vm) - n:] if n < len(self.vm) else self.vm
                    if n == 0: self.vm = []
                m = re.search(r"lgkmcnt\((\d+)\)", c.text)
                if m:
                    n = int(m.group(1)); self.lg = self.lg[len(self.lg) - n:] if n < len(self.lg) else self.lg
                    if n == 0: self.lg = []
            if len(self.vm) > 63: raise RuntimeError("[%s] more than 63 vmem outstanding" % self.name)
        self.ins.append(c)
    def wait_vm_for(self, regs):
        last = -1
        for i, (d, t) in enumerate(self.vm):
            if d & regs: last = i
        if last >= 0: self("s_waitcnt vmcnt(%d)" % (len(self.vm) - 1 - last))
    def wait_lg_for(self, regs):
        last = -1
        for i, (d, t) in enumerate(self.lg):
            if d & regs: last = i
        if last >= 0: self("s_waitcnt lgkmcnt(%d)" % min(15, len(self.lg) - 1 - last))
    def text(self):
        return "".join((i.text + "\n") if i.kind == "label" else ("    " + i.text + "\n") for i in self.ins)

def vr(a, n=1):
    return "v%d" % a if n == 1 else "v[%d:%d]" % (a, a + n - 1)
def vset(a, n=1):
    return {("v", i) for i in range(a, a + n)}

def wrap(body, grid, block, lds, vgpr=256, sgpr=102, accum=None, name=None):
    name = name or NAME + "_kernel"
    accum = accum if accum is not None else ((vgpr + 3) // 4) * 4
    return (HEADER_COMMENT +
      "; @launch grid=(%d,1,1) block=(%d,1,1) lds=%d\n" % (grid, block, lds) +
      '.amdgcn_target "amdgcn-amd-amdhsa--gfx950"\n.text\n.globl %s\n.p2align 8\n.type %s,@function\n%s:\n' % (name, name, name) +
      body + "    s_endpgm\n" +
      '.section .rodata,"a"\n.p2align 6\n.amdhsa_kernel %s\n' % name +
      "  .amdhsa_next_free_vgpr %d\n  .amdhsa_next_free_sgpr %d\n  .amdhsa_accum_offset %d\n" % (vgpr, sgpr, accum) +
      "  .amdhsa_group_segment_fixed_size 0\n  .amdhsa_kernarg_size 80\n  .amdhsa_user_sgpr_count 2\n  .amdhsa_user_sgpr_kernarg_segment_ptr 1\n  .amdhsa_system_sgpr_workgroup_id_x 1\n" +
      "  .amdhsa_float_denorm_mode_32 3\n  .amdhsa_float_denorm_mode_16_64 3\n" +
      ".end_amdhsa_kernel\n")
```

```python
import sys
sys.path.insert(0, "work")
from asmlib import *

class O:
    ws_base = 0
    mimic = 1
    rot = 1
    stamps = 0
    force_slow = 0
    spin = 40000
    gather_it_mlp = 2
    gather_it_att = 3
    kvflag_it = 1
    lprio = 2
    stop = ""
for arg in sys.argv[2:]:
    k, v = arg.split("=")
    setattr(O, k, type(getattr(O, k))(int(v, 0)) if isinstance(getattr(O, k), int) else v)

H_OFF = O.ws_base
STAT_OFF = H_OFF + 0x900000
XCC_OFF = STAT_OFF + 0x8000
FLAG_OFF = XCC_OFF + 0x1000
FKV_OFF = FLAG_OFF + 0x1000
ZT_OFF = FKV_OFF + 0x1000
KVP_OFF = ZT_OFF + 0x8000
STAMP_OFF = KVP_OFF + 0x80000
SLOT_M = 45056; SLOT_A = 32768; SLOT_B = 24576
SM = 0
RB0 = 4096
SM_CNT = SM; SM_EP = SM + 4; SM_HR = SM + 8; SM_OR = SM + 12
SM_OWN = SM + 64
SM_MEAN = SM + 256; SM_RSTD = SM + 768
SM_CS = SM + 1280
PHI = 98304
LSTG = 65536 + 4096
LPART = 98304
LDS_BYTES = 163840
SX, SWQ, SW2, SWO, SWS, SDBG, SOUT, SPHI, SW1 = ["s[%d:%d]" % (i, i + 3) for i in (24, 28, 32, 36, 40, 44, 48, 52, 72)]
S_WAVE, S_MBLK, S_ROLE, S_M64, S_NT, S_W4, S_G, S_EP, S_FAST = 3, 56, 57, 58, 59, 60, 61, 62, 63
LOG2E = 0x3fb8aa3b

NSTAMP = 10
def stamp(a, k):
    if not O.stamps: return
    a("s_waitcnt lgkmcnt(0)")
    a("s_memrealtime s[%d:%d]" % (80 + 2 * k, 81 + 2 * k))
    a("s_waitcnt lgkmcnt(0)")

def stamps_out(a, vt, vt2):
    if not O.stamps: return
    a("v_mov_b32 v%d, 0" % vt)
    for k in range(NSTAMP):
        a("v_writelane_b32 v%d, s%d, %d" % (vt, 80 + 2 * k, k))
    a("v_lshlrev_b32 v%d, 2, v0" % vt2)
    a("s_lshl_b32 s64, s2, 3\ns_add_u32 s64, s64, s3\ns_lshl_b32 s64, s64, 6\ns_add_u32 s64, s64, 0x%x" % STAMP_OFF)
    a("s_mov_b64 exec, 0xffff")
    a("buffer_store_dword v%d, v%d, %s, s64 offen" % (vt, vt2, SWS))
    a("s_mov_b64 exec, -1")

def mfma32(a, d, A, B, c=None):
    a("v_mfma_f32_16x16x32_bf16 %s, %s, %s, %s" % (vr(d, 4), vr(A, 4), vr(B, 4), vr(d, 4) if c is None else c))
def mfma16(a, d, A, B, c=None):
    a("v_mfma_f32_16x16x16_bf16 %s, %s, %s, %s" % (vr(d, 4), vr(A, 2), vr(B, 2), vr(d, 4) if c is None else c))

def spin_tail(a, loop, done, sleep, code):
    a("s_sub_u32 s70, s70, 1")
    a("s_cbranch_scc1 %s" % done)
    a("s_sleep %d" % sleep)
    a("s_branch %s" % loop)

def lds_spin(a, vaddr, vt, sleep=1, want=None):
    L = a.label("LSP"); D = a.label("LSPD")
    a("s_mov_b32 s70, %d" % (O.spin * 4))
    a(L + ":")
    a("ds_read_b32 v%d, v%d" % (vt, vaddr))
    a("s_waitcnt lgkmcnt(0)")
    a("v_readfirstlane_b32 s71, v%d" % vt)
    if want is None: a("s_cmp_lg_u32 s71, 0")
    else: a("s_cmp_eq_u32 s71, %d" % want)
    a("s_cbranch_scc1 %s" % D)
    spin_tail(a, L, D, sleep, 1)
    a(D + ":")

def flag_poll(a, vaddr, soff, vt, which, sleep=2):
    L = a.label("FP"); D = a.label("FPD")
    a("s_mov_b32 s70, %d" % O.spin)
    a(L + ":")
    a("buffer_load_dword v%d, v%d, %s, s%d offen sc1" % (vt, vaddr, SWS, soff))
    a("s_waitcnt vmcnt(0)")
    a("v_cmp_eq_u32 vcc, s%d, v%d" % (S_EP, vt))
    if which == "lo": a("s_cmp_eq_u32 vcc_lo, -1")
    elif which == "hi": a("s_cmp_eq_u32 vcc_hi, -1")
    else: a("s_cmp_eq_u64 vcc, -1")
    a("s_cbranch_scc1 %s" % D)
    spin_tail(a, L, D, sleep, 2)
    a(D + ":")

def prologue(a):
    a("""
    s_load_dwordx16 s[4:19], s[0:1], 0
    s_load_dwordx4 s[20:23], s[0:1], 64
    s_cmp_ge_u32 s2, 256
    s_cbranch_scc1 L_END
    v_lshrrev_b32 v1, 6, v0
    v_and_b32 v0, 63, v0
    s_and_b32 s61, s2, 7
    v_readfirstlane_b32 s3, v1
    s_lshr_b32 s64, s2, 3
    s_lshr_b32 s65, s64, 4
    s_lshl_b32 s56, s61, 1
    s_add_u32 s56, s56, s65
    s_and_b32 s57, s64, 15
    s_lshr_b32 s65, s64, 3
    s_lshl_b32 s58, s61, 2
    s_add_u32 s58, s58, s65
    s_and_b32 s59, s64, 7
    s_and_b32 s60, s3, 3
    s_mov_b32 s62, 0
    s_mov_b32 s63, 0
    """)
    if not O.rot: a("s_mov_b32 s61, 0")
    if O.stamps:
        for k in range(NSTAMP): a("s_mov_b64 s[%d:%d], 0" % (80 + 2 * k, 81 + 2 * k))
    a("s_waitcnt lgkmcnt(0)")
    for base, ptr, size in ((24, 4, 0x200000), (28, 6, 1572864), (32, 16, 1835008), (36, 10, 524288), (40, 22, 0x10000000),
                            (44, 20, 256), (48, 18, 0x200000), (52, 8, 16384), (72, 14, 1835008)):
        a("s_mov_b32 s%d, s%d\ns_and_b32 s%d, s%d, 0xffff\ns_mov_b32 s%d, 0x%x\ns_mov_b32 s%d, 0x20000" % (base, ptr, base + 1, ptr + 1, base + 2, size, base + 3))
    stamp(a, 0)
    a("""
    s_cmp_ge_u32 s3, 4
    s_cbranch_scc1 L_LW
    s_cmp_lt_u32 s57, 8
    s_cbranch_scc1 L_ATT_C
    s_cmp_lt_u32 s3, 2
    s_cbranch_scc1 L_MLP_C0
    s_branch L_MLP_C1
    L_LW:
    s_cmp_lt_u32 s57, 8
    s_cbranch_scc1 L_ATT_L
    s_branch L_MLP_L
    """)

def c_start(a, T):
    xr = T; f = T + 8; t = T + 24
    a("""
    v_lshrrev_b32 v{t}, 5, v0
    s_lshl_b32 s64, s56, 7
    s_lshl_b32 s65, s57, 3
    s_add_u32 s64, s64, s65
    s_lshl_b32 s65, s60, 1
    s_add_u32 s64, s64, s65
    v_add_u32 v{t}, s64, v{t}
    v_lshlrev_b32 v{t}, 10, v{t}
    v_and_b32 v{t1}, 31, v0
    v_lshl_add_u32 v{t}, v{t1}, 4, v{t}
    buffer_load_dwordx4 v[{x0}:{x3}], v{t}, {SX}, 0 offen
    buffer_load_dwordx4 v[{x4}:{x7}], v{t}, {SX}, 0 offen offset:512
    """.format(t=t, t1=t + 1, x0=xr, x3=xr + 3, x4=xr + 4, x7=xr + 7, SX=SX))
    a("s_cmp_lg_u32 s3, 0\ns_cbranch_scc1 L_CS1_%s" % a.name)
    a("v_mov_b32 v%d, %d" % (t + 2, SM))
    for i in range(4): a("v_mov_b32 v%d, 0" % (t + 4 + i))
    a("ds_write_b128 v%d, %s" % (t + 2, vr(t + 4, 4)))
    a("s_cmp_lg_u32 s2, 0\ns_cbranch_scc1 L_CS1_%s" % a.name)
    a("s_memrealtime s[64:65]")
    a("s_waitcnt lgkmcnt(0)")
    a("s_or_b32 s62, s64, 1")
    a("v_mov_b32 v%d, s62\nv_mov_b32 v%d, 0" % (t + 4, t + 5))
    a("s_mov_b64 exec, 1")
    keep = list(a.vm)
    a("buffer_store_dword v%d, v%d, %s, 0 offen sc1" % (t + 4, t + 5, SDBG))
    a("s_mov_b64 exec, -1")
    a("L_CS1_%s:" % a.name)
    a("s_waitcnt lgkmcnt(0)")
    a("s_barrier")
    a("s_waitcnt vmcnt(0)")
    for i in range(8):
        a("v_lshlrev_b32 v%d, 16, v%d" % (f + 2 * i, xr + i))
        a("v_and_b32 v%d, 0xffff0000, v%d" % (f + 2 * i + 1, xr + i))
    def reduce32(s, u):
        for n in (8, 4, 2, 1):
            a("v_add_f32_dpp v%d, v%d, v%d row_ror:%d row_mask:0xf bank_mask:0xf" % (s, s, s, n))
        a("v_mov_b32 v%d, v%d" % (u, s))
        a("v_permlane16_swap_b32 v%d, v%d" % (s, u))
        a("v_add_f32 v%d, v%d, v%d" % (s, s, u))
    s = t; u = t + 1
    a("v_add_f32 v%d, v%d, v%d" % (s, f, f + 1))
    a("v_add_f32 v%d, v%d, v%d" % (u, f + 2, f + 3))
    for i in range(4, 16, 2):
        a("v_add_f32 v%d, v%d, v%d" % (s, s, f + i))
        a("v_add_f32 v%d, v%d, v%d" % (u, u, f + i + 1))
    a("v_add_f32 v%d, v%d, v%d" % (s, s, u))
    reduce32(s, u)
    mean = t + 2; rstd = t + 3
    a("v_mul_f32 v%d, 0x3b000000, v%d" % (mean, s))
    for i in range(16): a("v_sub_f32 v%d, v%d, v%d" % (f + i, f + i, mean))
    a("v_mul_f32 v%d, v%d, v%d" % (s, f, f))
    a("v_mul_f32 v%d, v%d, v%d" % (u, f + 1, f + 1))
    for i in range(2, 16, 2):
        a("v_fmac_f32 v%d, v%d, v%d" % (s, f + i, f + i))
        a("v_fmac_f32 v%d, v%d, v%d" % (u, f + i + 1, f + i + 1))
    a("v_add_f32 v%d, v%d, v%d" % (s, s, u))
    reduce32(s, u)
    a("v_mul_f32 v%d, 0x3b000000, v%d" % (s, s))
    def rnd(r):
        a("v_cvt_pk_bf16_f32 v%d, v%d, v%d" % (r, r, r))
        a("v_lshlrev_b32 v%d, 16, v%d" % (r, r))
    if O.mimic: rnd(s); rnd(mean)
    a("v_add_f32 v%d, 0x3727c5ac, v%d" % (s, s))
    if O.mimic: rnd(s)
    a("v_sqrt_f32 v%d, v%d" % (s, s))
    if O.mimic: rnd(s)
    a("v_rcp_f32 v%d, v%d" % (rstd, s))
    a("v_lshrrev_b32 v%d, 5, v0" % u)
    a("s_lshl_b32 s64, s60, 4\ns_add_u32 s64, s64, %d" % SM_OWN)
    a("v_lshl_add_u32 v%d, v%d, 3, s64" % (u, u))
    a("ds_write_b64 v%d, %s" % (u, vr(mean, 2)))
    a("v_mov_b32 v%d, %d" % (s, SM))
    a("s_cmp_eq_u32 s3, 0\ns_cbranch_scc1 L_CS2_%s" % a.name)
    a("v_mov_b32 v%d, 1" % u)
    a("s_mov_b64 exec, 1")
    a("ds_add_u32 v%d, v%d" % (s, u))
    a("s_mov_b64 exec, -1")
    a("s_branch L_CS3_%s" % a.name)
    a("L_CS2_%s:" % a.name)
    L = a.label("EP"); D = a.label("EPD")
    a("s_cmp_lg_u32 s62, 0\ns_cbranch_scc1 %s" % D)
    a("v_mov_b32 v%d, 0" % u)
    a("s_mov_b32 s70, %d" % O.spin)
    a(L + ":")
    a("buffer_load_dword v%d, v%d, %s, 0 offen sc1" % (t + 4, u, SDBG))
    a("s_waitcnt vmcnt(0)")
    a("v_readfirstlane_b32 s62, v%d" % (t + 4))
    a("s_cmp_lg_u32 s62, 0\ns_cbranch_scc1 %s" % D)
    spin_tail(a, L, D, 2, 3)
    a(D + ":")
    lds_spin(a, s, u, 1, want=3)
    g = t + 4
    a("v_lshlrev_b32 v%d, 3, v0" % u)
    a("v_and_b32 v%d, 63, v%d" % (u, u))
    a("ds_read_b64 %s, v%d offset:%d" % (vr(t + 8, 2), u, SM_OWN))
    a("v_mov_b32 v%d, s62" % (t + 10))
    a("ds_write_b32 v%d, v%d offset:4" % (s, t + 10))
    a("s_getreg_b32 s64, hwreg(HW_REG_XCC_ID)")
    a("v_mov_b32 v%d, s64" % (t + 11))
    a("s_lshl_b32 s64, s56, 11\ns_lshl_b32 s65, s57, 7\ns_add_u32 s64, s64, s65\ns_add_u32 s64, s64, 0x%x" % STAT_OFF)
    a("v_lshl_add_u32 v%d, v0, 4, s64" % u)
    a("s_lshl_b32 s64, s56, 8\ns_lshl_b32 s65, s57, 4\ns_add_u32 s64, s64, s65\ns_add_u32 s64, s64, 0x%x" % XCC_OFF)
    a("v_mov_b32 v%d, s64" % (t + 12))
    a("v_cmp_gt_u32 vcc, 8, v0")
    a("v_cndmask_b32 v%d, v%d, v%d, vcc" % (u, t + 12, u))
    a("s_waitcnt lgkmcnt(0)")
    a("v_cndmask_b32 v%d, v%d, v%d, vcc" % (g, t + 11, t + 8))
    a("v_cndmask_b32 v%d, v%d, v%d, vcc" % (g + 2, t + 11, t + 9))
    a("v_mov_b32 v%d, s62\nv_mov_b32 v%d, s62" % (g + 1, g + 3))
    a("s_mov_b64 exec, 0x1ff")
    a("buffer_store_dwordx4 %s, v%d, %s, 0 offen sc1" % (vr(g, 4), u, SWS))
    a("s_mov_b64 exec, -1")
    a("L_CS3_%s:" % a.name)
    a.vm = []

def read_epoch(a, vt):
    a("v_mov_b32 v%d, %d" % (vt, SM_EP))
    a("ds_read_b32 v%d, v%d" % (vt, vt))
    a("s_waitcnt lgkmcnt(0)")
    a("v_readfirstlane_b32 s62, v%d" % vt)

def gather_issue(a, G, va, nrow):
    for i in range(nrow):
        a("buffer_load_dwordx4 %s, v%d, %s, 0 offen offset:%d sc1" % (vr(G + 4 * i, 4), va, SWS, 1024 * i))
    a("buffer_load_dwordx4 %s, v%d, %s, 0 offen sc1" % (vr(G + 4 * nrow, 4), va + 1, SWS))

def gather_addr(a, va, rowbase_s):
    a("s_lshl_b32 s64, s56, 11\ns_add_u32 s64, s64, 0x%x" % (STAT_OFF + rowbase_s * 16))
    a("v_lshl_add_u32 v%d, v0, 4, s64" % va)
    a("s_lshl_b32 s64, s56, 8\ns_add_u32 s64, s64, 0x%x" % XCC_OFF)
    a("v_and_b32 v%d, 15, v0" % (va + 1))
    a("v_lshl_add_u32 v%d, v%d, 4, s64" % (va + 1, va + 1))

def gather_check(a, G, va, nrow, rowbase, vt):
    L = a.label("GC"); D = a.label("GCD")
    a("s_mov_b32 s70, %d" % O.spin)
    a(L + ":")
    a("s_waitcnt vmcnt(0)")
    a("s_mov_b64 s[64:65], -1")
    for i in range(nrow + 1):
        for j in (1, 3):
            a("v_cmp_eq_u32 vcc, s62, v%d" % (G + 4 * i + j))
            a("s_and_b64 s[64:65], s[64:65], vcc")
    a("s_cmp_eq_u64 s[64:65], -1")
    a("s_cbranch_scc1 %s" % D)
    a("s_sub_u32 s70, s70, 1")
    a("s_cbranch_scc1 %s" % D)
    a("s_sleep 1")
    gather_issue(a, G, va, nrow)
    a("s_branch %s" % L)
    a(D + ":")
    a.vm = []
    X = G + 4 * nrow
    a("v_readfirstlane_b32 s64, v%d" % X)
    a("v_cmp_eq_u32 vcc, s64, v%d" % X)
    a("s_cmp_eq_u64 vcc, -1")
    a("s_cselect_b32 s63, %d, 0" % (0 if O.force_slow else 1))
    a("v_lshlrev_b32 v%d, 2, v0" % vt)
    for i in range(nrow):
        a("ds_write_b32 v%d, v%d offset:%d" % (vt, G + 4 * i, SM_MEAN + (rowbase + 64 * i) * 4))
        a("ds_write_b32 v%d, v%d offset:%d" % (vt, G + 4 * i + 2, SM_RSTD + (rowbase + 64 * i) * 4))

def interleave(a, mf, rd):
    rd = list(rd)
    for fn, regs in mf:
        a.wait_lg_for(regs)
        fn()
        if rd: a(rd.pop(0))
    for r in rd: a(r)

def gemm_loop(a, name, reads, mfmas, hooks, bar_last):
    for r in reads(0, 0, 0): a(r)
    pre = list(a.lg)
    a("s_mov_b32 s66, 0")
    a("s_branch L_%s_B0" % name)
    a("L_%s_TOP:" % name)
    a.lg = []
    for it, fn in hooks.items():
        S = a.label("HK")
        a("s_cmp_lg_u32 s66, %d\ns_cbranch_scc1 %s" % (it, S))
        fn()
        a(S + ":")
    interleave(a, mfmas(1, False), reads(0, 0, 0))
    a("L_%s_B0:" % name)
    a.lg = pre
    interleave(a, mfmas(0, False), reads(0, 1, 1))
    a("s_waitcnt lgkmcnt(0)\ns_barrier")
    interleave(a, mfmas(1, False), reads(1, 0, 0))
    interleave(a, mfmas(0, False), reads(1, 1, 1))
    a("s_add_u32 s66, s66, 1")
    a("s_cmp_eq_u32 s66, 4")
    a("s_waitcnt lgkmcnt(0)")
    a("s_cbranch_scc1 L_%s_TAIL" % name)
    a("s_barrier")
    a("s_branch L_%s_TOP" % name)
    a("L_%s_TAIL:" % name)

def w_base0(a, d, t):
    a("""
    v_lshrrev_b32 v{t}, 4, v0
    v_lshlrev_b32 v{d}, 10, v{t}
    v_and_b32 v{t}, 1, v{t}
    v_lshl_or_b32 v{d}, v{t}, 6, v{d}
    v_bfe_u32 v{t}, v0, 2, 2
    v_lshl_or_b32 v{d}, v{t}, 7, v{d}
    v_bfe_u32 v{t}, v0, 3, 1
    v_lshl_or_b32 v{d}, v{t}, 5, v{d}
    v_and_b32 v{t}, 3, v0
    v_lshl_or_b32 v{d}, v{t}, 3, v{d}
    """.format(d=d, t=t))

def x_addr(a, d, t, rowbase):
    a("""
    v_and_b32 v{t}, 15, v0
    v_lshlrev_b32 v{d}, 7, v{t}
    v_lshrrev_b32 v{t}, 1, v{t}
    v_lshrrev_b32 v{e}, 4, v0
    v_xor_b32 v{t}, v{t}, v{e}
    v_lshl_or_b32 v{d}, v{t}, 4, v{d}
    v_add_u32 v{d}, {rb}, v{d}
    v_xor_b32 v{e}, 64, v{d}
    """.format(d=d, t=t, e=d + 1, rb=rowbase * 128 + RB0))

FB = 112
def pf_addr(a, vg, vw, vt0, stg_s):
    t = vt0 + 3
    a("""
    v_lshrrev_b32 v{t}, 3, v0
    v_lshlrev_b32 v{vg}, 10, v{t}
    v_lshlrev_b32 v{vw}, 7, v{t}
    v_and_b32 v{t}, 7, v0
    v_lshl_or_b32 v{vg}, v{t}, 4, v{vg}
    s_lshl_b32 s64, s59, 7
    v_add_u32 v{vg}, s64, v{vg}
    v_lshrrev_b32 v{r}, 4, v0
    v_lshlrev_b32 v{r}, 1, v{r}
    v_xor_b32 v{t}, v{t}, v{r}
    v_lshl_or_b32 v{vw}, v{t}, 4, v{vw}
    v_add_u32 v{vw}, s{s}, v{vw}
    v_lshrrev_b32 v{t}, 2, v0
    v_lshlrev_b32 v{r}, 7, v{t}
    v_bfe_u32 v{t}, v0, 3, 2
    v_lshl_or_b32 v{r}, v{t}, 5, v{r}
    v_and_b32 v{t}, 3, v0
    v_lshl_or_b32 v{r}, v{t}, 3, v{r}
    v_add_u32 v{r}, s{s}, v{r}
    v_xor_b32 v{r1}, 32, v{r}
    v_xor_b32 v{r2}, 64, v{r}
    v_xor_b32 v{r3}, 96, v{r}
    """.format(t=t, vg=vg, vw=vw, r=vt0, r1=vt0 + 1, r2=vt0 + 2, r3=vt0 + 3, s=stg_s))

def pf_loads(a, j, vg, srd, ks_s, ks_add):
    a("s_add_u32 s64, s%d, %d\ns_lshl_b32 s64, s64, 15" % (ks_s, ks_add))
    for i in range(4):
        a("buffer_load_dwordx4 %s, v%d, %s, s64 offen" % (vr(FB + 16 * j + 4 * i, 4), vg, srd))
        if i < 3: a("s_add_u32 s64, s64, 8192")

def pf_stage(a, j, vw, vt0):
    a.wait_vm_for(vset(FB + 16 * j, 16))
    for i in range(4):
        a("ds_write_b128 v%d, %s offset:%d" % (vw, vr(FB + 16 * j + 4 * i, 4), 1024 * i))
    for t in range(4):
        a("ds_read_b64_tr_b16 %s, v%d" % (vr(FB + 16 * j + 4 * t, 2), vt0 + t))
        a("ds_read_b64_tr_b16 %s, v%d offset:2048" % (vr(FB + 16 * j + 4 * t + 2, 2), vt0 + t))

def resid_load(a, vx, vt):
    a("""
    s_lshl_b32 s64, s58, 6
    s_lshr_b32 s65, s3, 1
    s_lshl_b32 s65, s65, 4
    s_add_u32 s64, s64, s65
    s_lshl_b32 s64, s64, 10
    s_lshl_b32 s65, s59, 7
    s_add_u32 s64, s64, s65
    s_and_b32 s65, s3, 1
    s_lshl_b32 s65, s65, 6
    s_add_u32 s64, s64, s65
    v_and_b32 v{t}, 15, v0
    v_lshlrev_b32 v{t}, 10, v{t}
    v_and_b32 v{x}, 48, v0
    v_add3_u32 v{t}, v{t}, v{x}, s64
    buffer_load_dwordx4 v[{x}:{x3}], v{t}, {SX}, 0 offen
    """.format(t=vt, x=vx, x3=vx + 3, SX=SX))

def final_reduce(a, vx, vo, T):
    ad = T; rs = T + 2; acc = T + 4; buf = T + 12
    a("""
    v_and_b32 v{ad}, 15, v0
    v_lshlrev_b32 v{rs}, 2, v{ad}
    v_lshlrev_b32 v{ad}, 4, v{ad}
    v_bfe_u32 v{t}, v0, 4, 1
    v_lshl_or_b32 v{ad}, v{t}, 9, v{ad}
    v_lshrrev_b32 v{t}, 5, v0
    v_lshl_or_b32 v{ad}, v{t}, 10, v{ad}
    s_lshl_b32 s64, s3, 11
    v_add_u32 v{ad}, s64, v{ad}
    v_add_u32 v{ad1}, {LP}, v{ad}
    s_and_b32 s64, s58, 1
    s_lshl_b32 s64, s64, 8
    s_lshr_b32 s65, s3, 1
    s_lshl_b32 s65, s65, 6
    s_add_u32 s64, s64, s65
    v_add_u32 v{rs}, s64, v{rs}
    ds_read_b32 v{rs}, v{rs} offset:{RS}
    """.format(ad=ad, ad1=ad + 1, rs=rs, t=acc, LP=LPART, RS=SM_RSTD))
    for p in range(4):
        a("ds_read_b128 %s, v%d offset:%d" % (vr(buf + 8 * p, 4), ad + 1, p * 16384))
        a("ds_read_b128 %s, v%d offset:%d" % (vr(buf + 8 * p + 4, 4), ad + 1, p * 16384 + 256))
    for p in range(4, 8):
        a("ds_read_b128 %s, v%d offset:%d" % (vr(buf + 8 * p, 4), ad, (p - 4) * 16384 + RB0))
        a("ds_read_b128 %s, v%d offset:%d" % (vr(buf + 8 * p + 4, 4), ad, (p - 4) * 16384 + 256 + RB0))
    def padd(d, x, y):
        a.wait_lg_for(vset(x, 8) | vset(y, 8))
        for i in range(0, 8, 2): a("v_pk_add_f32 %s, %s, %s" % (vr(d + i, 2), vr(x + i, 2), vr(y + i, 2)))
    padd(acc, buf, buf + 8); padd(acc, acc, buf + 16); padd(acc, acc, buf + 24)
    a.wait_lg_for(vset(buf + 32, 8) | vset(rs))
    for i in range(0, 8, 2):
        a("v_pk_fma_f32 %s, %s, %s, %s op_sel_hi:[1,0,1]" % (vr(acc + i, 2), vr(acc + i, 2), vr(rs, 2), vr(buf + 32 + i, 2)))
    padd(acc, acc, buf + 40); padd(acc, acc, buf + 48); padd(acc, acc, buf + 56)
    a.wait_vm_for(vset(vx, 4))
    for i in range(4):
        a("v_lshlrev_b32 v%d, 16, v%d" % (buf + 2 * i, vx + i))
        a("v_and_b32 v%d, 0xffff0000, v%d" % (buf + 2 * i + 1, vx + i))
    padd(acc, acc, buf)
    for i in range(4): a("v_cvt_pk_bf16_f32 v%d, v%d, v%d" % (buf + 8 + i, acc + 2 * i, acc + 2 * i + 1))
    a("buffer_store_dwordx4 %s, v%d, %s, 0 offen" % (vr(buf + 8, 4), vo, SOUT))

def p2_hbase(a, sd, ks_s, ks_add):
    a("s_mul_i32 s%d, s58, %d" % (sd, 4 * 72))
    a("s_add_u32 s%d, s%d, s%d" % (sd, sd, ks_s))
    a("s_add_u32 s%d, s%d, %d" % (sd, sd, ks_add))
    a("s_lshl_b32 s%d, s%d, 10" % (sd, sd))
    a("s_add_u32 s%d, s%d, 0x%x" % (sd, sd, H_OFF))

def hload(a, dst, vl, sbase, strip, k):
    off = strip * 73728 + k * 1024
    a("s_add_u32 s64, s%d, %d" % (sbase, off & ~4095))
    a("buffer_load_dwordx4 %s, v%d, %s, s64 offen offset:%d sc1" % (vr(dst, 4), vl, SWS, off & 4095))

def p2_L(a):
    vl = 15; vx = 104; vo = 108; acc = 88; t = 109
    resid_load(a, vx, vo)
    a("v_lshlrev_b32 v%d, 4, v0" % vl)
    a("s_mul_i32 s67, s60, 9")
    p2_hbase(a, 68, 67, 0)
    a("v_mov_b32 v%d, %d" % (t, SM_HR))
    a("s_cmp_lg_u32 s60, 0\ns_cbranch_scc1 L_HRW_%s" % a.name)
    a("v_lshlrev_b32 v%d, 2, v0" % (t + 1))
    a("s_lshl_b32 s69, s56, 8\ns_add_u32 s69, s69, 0x%x" % FLAG_OFF)
    sv = list(a.vm)
    flag_poll(a, t + 1, 69, t + 2, "hi")
    a("v_mov_b32 v%d, 1" % (t + 2))
    a("ds_write_b32 v%d, v%d" % (t, t + 2))
    a("s_branch L_HRD_%s" % a.name)
    a("L_HRW_%s:" % a.name)
    a.vm = sv
    lds_spin(a, t, t + 2, 1)
    a("L_HRD_%s:" % a.name)
    stamp(a, 5)
    buf = lambda s, k: 16 + 36 * (s & 1) + 4 * k
    for s in range(2):
        for k in range(9): hload(a, buf(s, k), vl, 68, s, k)
    a("s_lshl_b32 s69, s60, 14\ns_add_u32 s69, s69, %d" % LPART)
    a("v_add_u32 v%d, s69, v%d" % (t, vl))
    for s in range(4):
        for k in range(9):
            a.wait_vm_for(vset(buf(s, k), 4))
            a.wait_lg_for(vset(FB + 16 * k, 16))
            for n in range(4): mfma32(a, acc + 4 * n, FB + 16 * k + 4 * n, buf(s, k), "0" if k == 0 else None)
            if s + 2 < 4: hload(a, buf(s, k), vl, 68, s + 2, k)
        for n in range(4): a("ds_write_b128 v%d, %s offset:%d" % (t, vr(acc + 4 * n, 4), s * 4096 + n * 1024))
    stamp(a, 6)
    a("s_waitcnt lgkmcnt(0)\ns_barrier")
    stamp(a, 7)
    final_reduce(a, vx, vo, 16)
    stamp(a, 8)
    stamps_out(a, 110, 111)

def p2_C(a):
    vl = 3; vx = 4; vo = 2; t = 1; acc = 48; rs = 40
    resid_load(a, vx, vo)
    a("v_lshlrev_b32 v%d, 4, v0" % vl)
    a("s_mul_i32 s67, s60, 5")
    p2_hbase(a, 68, 67, 36)
    a("v_and_b32 v%d, 15, v0\nv_lshlrev_b32 v%d, 2, v%d" % (t, t, t))
    a("s_and_b32 s64, s58, 1\ns_lshl_b32 s64, s64, 8\nv_add_u32 v%d, s64, v%d" % (t, t))
    for s in range(4): a("ds_read_b32 v%d, v%d offset:%d" % (rs + 2 * s, t, SM_RSTD + 64 * s))
    a("v_mov_b32 v%d, %d" % (t, SM_HR))
    lds_spin(a, t, 8, 1)
    stamp(a, 5)
    seq = [(s, k) for s in range(4) for k in range(5)]
    NB = 8
    buf = lambda i: 8 + 4 * (i % NB)
    for i in range(NB): hload(a, buf(i), vl, 68, *seq[i])
    for i, (s, k) in enumerate(seq):
        a.wait_vm_for(vset(buf(i), 4))
        a.wait_lg_for(vset(FB + 16 * k, 16))
        for n in range(4): mfma32(a, acc + 16 * s + 4 * n, FB + 16 * k + 4 * n, buf(i), "0" if k == 0 else None)
        if i + NB < len(seq): hload(a, buf(i), vl, 68, *seq[i + NB])
    a("s_lshl_b32 s67, s60, 2")
    p2_hbase(a, 68, 67, 56)
    a("v_mov_b32 v%d, %d" % (t, SM_OR))
    a("s_cmp_lg_u32 s60, 0\ns_cbranch_scc1 L_ORW_%s" % a.name)
    a("v_lshlrev_b32 v%d, 2, v0" % 8)
    a("s_lshl_b32 s69, s56, 8\ns_add_u32 s69, s69, 0x%x" % FLAG_OFF)
    sv = list(a.vm)
    flag_poll(a, 8, 69, 9, "lo")
    a("v_mov_b32 v9, 1")
    a("ds_write_b32 v%d, v9" % t)
    a("s_branch L_ORD_%s" % a.name)
    a("L_ORW_%s:" % a.name)
    a.vm = sv
    lds_spin(a, t, 9, 1)
    a("L_ORD_%s:" % a.name)
    stamp(a, 6)
    ob = lambda s, k: FB + 16 * s + 4 * k
    for s in range(4):
        for k in range(4): hload(a, ob(s, k), vl, 68, s, k)
    for s in range(4):
        for i in range(0, 16, 2):
            a("v_pk_mul_f32 %s, %s, %s op_sel_hi:[1,0]" % (vr(acc + 16 * s + i, 2), vr(acc + 16 * s + i, 2), vr(rs + 2 * s, 2)))
    a("s_lshl_b32 s69, s60, 14\ns_add_u32 s69, s69, %d" % RB0)
    a("v_add_u32 v%d, s69, v%d" % (t, vl))
    for s in range(4):
        for k in range(4):
            a.wait_vm_for(vset(ob(s, k), 4))
            a.wait_lg_for(vset(FB + 16 * (5 + k), 16))
            for n in range(4): mfma32(a, acc + 16 * s + 4 * n, FB + 16 * (5 + k) + 4 * n, ob(s, k))
        if s > 0:
            for n in range(4): a("ds_write_b128 v%d, %s offset:%d" % (t, vr(acc + 16 * (s - 1) + 4 * n, 4), (s - 1) * 4096 + n * 1024))
    for n in range(4): a("ds_write_b128 v%d, %s offset:%d" % (t, vr(acc + 48 + 4 * n, 4), 3 * 4096 + n * 1024))
    a("s_waitcnt lgkmcnt(0)\ns_barrier")
    stamp(a, 7)
    final_reduce(a, vx, vo, 16)
    stamp(a, 8)
    stamps_out(a, 110, 111)

def c_prefetch_loads(a, vg):
    a("s_mul_i32 s67, s60, 5")
    for j in range(5): pf_loads(a, j, vg, SW2, 67, 36 + j)
    a("s_lshl_b32 s67, s60, 2")
    for j in range(4): pf_loads(a, 5 + j, vg, SWO, 67, j)

def flag_store(a, vt, sc):
    a("s_lshl_b32 s64, s56, 8\ns_lshl_b32 s65, s57, 4\ns_add_u32 s64, s64, s65\ns_lshl_b32 s65, s60, 2\ns_add_u32 s64, s64, s65\ns_add_u32 s64, s64, 0x%x" % FLAG_OFF)
    a("v_mov_b32 v%d, s62\nv_mov_b32 v%d, 0" % (vt, vt + 1))
    a("s_mov_b64 exec, 1")
    a("buffer_store_dword v%d, v%d, %s, s64 offen%s" % (vt, vt + 1, SWS, sc))
    a("s_mov_b64 exec, -1")

def mlp_C(wm):
    a = Asm("MC%d" % wm)
    a("L_MLP_C%d:" % wm)
    ACC = 16; CS = 128; X = (144, 160); W = (176, 204); ONES = 232; G = 236; GA = 10
    acc = lambda mt, p: ACC + 4 * (p * 4 + mt)
    cs_pos = [0, 1, 2, 3] if wm == 0 else [4, 5, 6]
    c_start(a, 144)
    x_addr(a, 1, 12, 64 * wm)
    w_base0(a, 12, 13)
    a("s_and_b32 s67, s60, 1")
    a("s_lshl_b32 s64, s67, 14\ns_add_u32 s64, s64, %d" % (16384 + RB0))
    for p in range(4):
        a("v_xor_b32 v%d, %d, v12\nv_add_u32 v%d, s64, v%d" % (3 + p, 32 * p, 3 + p, 3 + p))
    a("s_lshl_b32 s64, s67, 6")
    a("v_xor_b32 v13, s64, v12\nv_add_u32 v7, %d, v13\nv_xor_b32 v8, 32, v7" % (16384 + 8192 + RB0))
    a("""
    v_lshrrev_b32 v13, 4, v0
    v_lshlrev_b32 v9, 9, v13
    v_and_b32 v13, 1, v13
    v_xor_b32 v13, s67, v13
    v_lshl_or_b32 v9, v13, 5, v9
    v_bfe_u32 v13, v0, 2, 2
    v_lshl_or_b32 v9, v13, 6, v9
    v_and_b32 v13, 3, v0
    v_lshl_or_b32 v9, v13, 3, v9
    v_add_u32 v9, %d, v9
    """ % (16384 + 24576 + RB0))
    gather_addr(a, GA, 64 * wm)
    for i in range(ACC, CS + 16): a("v_mov_b32 v%d, 0" % i)
    for i in range(4): a("v_mov_b32 v%d, 0x3f803f80" % (ONES + i))
    if O.stamps: stamp(a, 1)
    a("s_waitcnt lgkmcnt(0)\ns_barrier")
    read_epoch(a, 12)
    stamp(a, 2)
    def reads(slot, ks, st):
        r = []
        for mt in range(4):
            r.append("ds_read_b128 %s, v%d offset:%d" % (vr(X[st] + 4 * mt, 4), 1 + ks, slot * SLOT_M + mt * 2048))
        for p in range(7):
            for h in range(2):
                off = slot * SLOT_M + (ks * 4096 + h * 512 if p < 6 else ks * 2048 + h * 256)
                r.append("ds_read_b64_tr_b16 %s, v%d offset:%d" % (vr(W[st] + 4 * p + 2 * h, 2), 3 + p, off))
        return r
    def mfmas(st, tail):
        m = []; c = []
        for p in range(7):
            for mt in range(4):
                m.append(((lambda p=p, mt=mt: mfma32(a, acc(mt, p), W[st] + 4 * p, X[st] + 4 * mt)), vset(W[st] + 4 * p, 4) | vset(X[st] + 4 * mt, 4)))
            if p in cs_pos:
                e = ((lambda p=p: mfma32(a, CS + 4 * cs_pos.index(p), W[st] + 4 * p, ONES)), vset(W[st] + 4 * p, 4))
                (c if tail else m).append(e)
        return c + m
    gemm_loop(a, "MC%d" % wm, reads, mfmas, {O.gather_it_mlp: lambda: gather_issue(a, G, GA, 1)}, False)
    tl = mfmas(1, True)
    ncs = len(cs_pos)
    for fn, _ in tl[:ncs + 8]: fn()
    a("v_lshrrev_b32 v12, 4, v0\nv_lshlrev_b32 v12, 4, v12")
    a("s_mul_i32 s64, s67, 448\nv_add_u32 v12, s64, v12")
    a("s_mov_b32 exec_lo, 0x00010001\ns_mov_b32 exec_hi, 0x00010001")
    for i, p in enumerate(cs_pos): a("ds_write_b128 v12, %s offset:%d" % (vr(CS + 4 * i, 4), SM_CS + 64 * p))
    a("s_mov_b64 exec, -1")
    for fn, _ in tl[ncs + 8:]: fn()
    gather_check(a, G, GA, 1, 64 * wm, 13)
    stamp(a, 3)
    a("s_waitcnt lgkmcnt(0)\ns_barrier")
    MEAN = 144; RCS = 176
    a("v_and_b32 v13, 15, v0\nv_lshlrev_b32 v13, 2, v13")
    for mt in range(4): a("ds_read_b32 v%d, v13 offset:%d" % (MEAN + 2 * mt, SM_MEAN + (64 * wm + 16 * mt) * 4))
    csr = {}
    for i, p in enumerate(cs_pos): csr[p] = CS + 4 * i
    k = 0
    for p in range(7):
        if p not in csr:
            csr[p] = RCS + 4 * k; k += 1
            a("ds_read_b128 %s, v12 offset:%d" % (vr(csr[p], 4), SM_CS + 64 * p))
    a("""
    s_sub_u32 s64, s57, 8
    s_and_b32 s65, s64, 1
    s_mul_i32 s64, s64, 7
    s_mul_i32 s68, s56, {mb}
    s_add_u32 s68, s68, s64
    s_add_u32 s68, s68, {wmo}
    s_lshl_b32 s68, s68, 10
    s_add_u32 s68, s68, {H}
    s_lshl_b32 s64, s65, 10
    s_add_u32 s76, s68, s64
    s_lshl_b32 s64, s67, 10
    s_add_u32 s77, s76, s64
    s_add_u32 s77, s77, 2048
    s_lshl_b32 s64, s67, 12
    s_add_u32 s76, s76, s64
    s_cmp_eq_u32 s65, 0
    s_cselect_b32 s64, 6144, 0
    s_add_u32 s78, s68, s64
    s_lshl_b32 s64, s67, 3
    s_add_u32 s78, s78, s64
    v_lshlrev_b32 v14, 4, v0
    """.format(mb=8 * 72, wmo=4 * wm * 72, H=H_OFF))
    order = [(0, 1), (2, 3), (4, 5), (6,)] if wm == 0 else [(4, 5), (6,), (0, 1), (2, 3)]
    def epilogue(sc):
        tq = [152, 156, 192, 196, 200]; ti = 0
        for grp in order:
            for mt in range(4):
                q = tq[ti % len(tq)]; ti += 1
                for i, p in enumerate(grp):
                    a.wait_lg_for(vset(csr[p], 4) | vset(MEAN + 2 * mt))
                    A = acc(mt, p)
                    for h in (0, 2):
                        a("v_pk_fma_f32 %s, %s, %s, %s op_sel_hi:[1,0,1] neg_lo:[0,1,0] neg_hi:[0,1,0]" % (vr(A + h, 2), vr(csr[p] + h, 2), vr(MEAN + 2 * mt, 2), vr(A + h, 2)))
                for i, p in enumerate(grp):
                    A = acc(mt, p)
                    for h in (0, 1): a("v_cvt_pk_bf16_f32 v%d, v%d, v%d" % (q + 2 * i + h, A + 2 * h, A + 2 * h + 1))
                for i in range(2 * len(grp)): a("v_pk_max_i16 v%d, v%d, 0" % (q + i, q + i))
                sb = {0: 76, 2: 76, 4: 77, 6: 78}[grp[0]]
                a("s_add_u32 s64, s%d, %d" % (sb, mt * 73728))
                if len(grp) == 2: a("buffer_store_dwordx4 %s, v14, %s, s64 offen offset:%d%s" % (vr(q, 4), SWS, 1024 if grp[0] == 2 else 0, sc))
                else: a("buffer_store_dwordx2 %s, v14, %s, s64 offen%s" % (vr(q, 2), SWS, sc))
        a("s_lshl_b32 s69, s60, 14\ns_add_u32 s69, s69, %d" % RB0)
        pf_addr(a, 1, 2, 4, 69)
        n0 = len(a.vm)
        c_prefetch_loads(a, 1)
        a("s_waitcnt vmcnt(36)")
        flag_store(a, 8, sc)
    a("s_cmp_eq_u32 s63, 0\ns_cbranch_scc1 L_MEP_S%d" % wm)
    sl, sv = list(a.lg), list(a.vm)
    epilogue("")
    a("s_branch L_MEP_D%d" % wm)
    a("L_MEP_S%d:" % wm)
    a.lg, a.vm = sl, sv
    epilogue(" sc1")
    a("L_MEP_D%d:" % wm)
    stamp(a, 4)
    if O.stop == "p1":
        a("s_endpgm"); return a
    for j in range(9): pf_stage(a, j, 2, 4)
    a("s_branch L_P2C")
    return a

class LStream:
    def __init__(self, a): self.a = a; self.q = []; self.busy = []
    def add(self, name, regs, issue): self.q.append((name, regs, issue))
    def pump(self, maxn=None):
        while self.q:
            name, regs, issue = self.q[0]
            n = len(regs) // 4
            if any(regs & r for _, r in self.busy) or len(self.a.vm) + n > 63: break
            issue(); self.busy.append((name, regs)); self.q.pop(0)
    def release(self, name): self.busy = [b for b in self.busy if b[0] != name]

def l_addr(a, wpitch, col_s):
    a("""
    v_lshrrev_b32 v9, 3, v0
    v_and_b32 v10, 7, v0
    s_lshl_b32 s64, s56, 7
    s_lshl_b32 s65, s60, 5
    s_add_u32 s64, s64, s65
    v_add_u32 v1, s64, v9
    v_lshlrev_b32 v1, 10, v1
    v_lshl_or_b32 v1, v10, 4, v1
    s_lshl_b32 s64, s60, 4
    v_add_u32 v11, s64, v9
    v_mul_u32_u24 v2, {wp}, v11
    v_lshl_add_u32 v2, v10, 4, v2
    v_add_u32 v2, s{cs}, v2
    """.format(wp=wpitch, cs=col_s))

def l_addr2(a):
    a("""
    v_add_u32 v4, s65, v9
    v_lshlrev_b32 v4, 7, v4
    v_lshrrev_b32 v12, 4, v0
    v_xor_b32 v12, v12, v10
    v_lshl_or_b32 v4, v12, 4, v4
    v_add_u32 v4, 4096, v4
    v_xor_b32 v5, 64, v4
    v_lshlrev_b32 v6, 7, v11
    v_bfe_u32 v12, v0, 4, 1
    v_lshlrev_b32 v12, 1, v12
    v_xor_b32 v12, v12, v10
    v_lshl_or_b32 v6, v12, 4, v6
    v_add_u32 v6, 20480, v6
    v_xor_b32 v7, 64, v6
    """)

def stage_loads(a, base, s, srd, wpitch, parts, hf):
    a("s_add_u32 s64, s61, %d\ns_and_b32 s64, s64, 7\ns_lshl_b32 s65, s64, 7\ns_mul_i32 s64, s64, %d" % (s, 64 * wpitch))
    r = base
    for i in range(4):
        a("buffer_load_dwordx4 %s, v1, %s, s65 offen" % (vr(r, 4), SX)); r += 4
        if i < 3: a("s_add_u32 s65, s65, 8192")
    a("s_add_u32 s65, s64, %d" % (8 * wpitch))
    for po in parts:
        a("buffer_load_dwordx4 %s, v2, %s, s64 offen offset:%d" % (vr(r, 4), srd, po)); r += 4
        a("buffer_load_dwordx4 %s, v2, %s, s65 offen offset:%d" % (vr(r, 4), srd, po)); r += 4
    if hf: a("buffer_load_dwordx4 %s, v3, %s, s64 offen" % (vr(r, 4), srd))

def stage_writes(a, base, slot_off, nparts, hf):
    r = base
    for i in range(4):
        a.wait_vm_for(vset(r, 4))
        a("ds_write_b128 v%d, %s offset:%d" % (4 + (i & 1), vr(r, 4), slot_off + 1024 * i)); r += 4
    for p in range(nparts):
        for i in range(2):
            a.wait_vm_for(vset(r, 4))
            a("ds_write_b128 v%d, %s offset:%d" % (6 + i, vr(r, 4), slot_off + 8192 * p + 1024 * i)); r += 4
    if hf:
        a.wait_vm_for(vset(r, 4))
        a("ds_write_b128 v8, %s offset:%d" % (vr(r, 4), slot_off))

def mlp_L():
    a = Asm("ML")
    a("L_MLP_L:")
    if O.lprio: a("s_setprio %d" % O.lprio)
    a("""
    s_sub_u32 s67, s57, 8
    s_and_b32 s68, s67, 1
    s_mul_i32 s67, s67, 448
    s_lshl_b32 s69, s68, 6
    s_add_u32 s69, s69, s67
    s_cmp_eq_u32 s68, 0
    s_cselect_b32 s68, 384, 0
    s_add_u32 s68, s68, s67
    """)
    l_addr(a, 3584, 69)
    a("""
    v_lshrrev_b32 v12, 2, v0
    v_add_u32 v12, s64, v12
    v_mul_u32_u24 v3, 3584, v12
    v_and_b32 v13, 3, v0
    v_lshl_add_u32 v3, v13, 4, v3
    v_add_u32 v3, s68, v3
    v_lshlrev_b32 v8, 6, v12
    v_lshrrev_b32 v12, 5, v0
    v_lshlrev_b32 v12, 1, v12
    v_xor_b32 v12, v12, v13
    v_lshl_or_b32 v8, v12, 4, v8
    v_add_u32 v8, %d, v8
    """ % (16384 + 24576 + RB0))
    ls = LStream(a)
    R = lambda s: 16 + 44 * (3 - (s & 3))
    for s in range(8): ls.add("S%d" % s, vset(R(s), 44), (lambda s=s: stage_loads(a, R(s), s, SW1, 3584, [0, 128, 256], True)))
    a("s_lshl_b32 s76, s60, 5")
    ls.pump()
    a("s_mov_b32 s65, s76")
    l_addr2(a)
    a("s_lshl_b32 s69, s60, 12\ns_add_u32 s69, s69, %d" % LSTG)
    pf_addr(a, 9, 10, 11, 69)
    a("s_mul_i32 s77, s60, 9")
    for j in (5, 6, 7, 8, 3, 4, 0, 1, 2): ls.add("F%d" % j, vset(FB + 16 * j, 16), (lambda j=j: pf_loads(a, j, 9, SW2, 77, j)))
    a("s_barrier")
    for s in range(8):
        stage_writes(a, R(s), (s & 1) * SLOT_M, 3, True)
        a("s_waitcnt lgkmcnt(0)")
        ls.release("S%d" % s); ls.pump()
        if s == 0: stamp(a, 1)
        a("s_barrier")
        if s == 0: read_epoch(a, 15); stamp(a, 2)
    stamp(a, 3)
    a("s_barrier")
    assert not ls.q
    if O.stop == "p1":
        a("s_endpgm"); return a
    for j in (5, 6, 7, 8, 3, 4, 0, 1, 2): pf_stage(a, j, 10, 11)
    stamp(a, 4)
    a("s_branch L_P2L")
    return a

def softmax_k(a, T, w8_s):
    P = T; E = T + 16; ad = T + 32; sc = T + 36; m = T + 38
    a("""
    s_lshl_b32 s64, s{w}, 12
    s_add_u32 s64, s64, {PHI}
    v_lshlrev_b32 v{ad}, 6, v0
    v_bfe_u32 v{m}, v0, 2, 1
    v_lshl_or_b32 v{ad}, v{m}, 5, v{ad}
    v_bfe_u32 v{m}, v0, 3, 1
    v_lshl_or_b32 v{ad}, v{m}, 4, v{ad}
    v_add_u32 v{ad}, s64, v{ad}
    v_xor_b32 v{ad1}, 16, v{ad}
    v_xor_b32 v{ad2}, 32, v{ad}
    v_xor_b32 v{ad3}, 48, v{ad}
    s_and_b32 s64, s{w}, 1
    s_lshl_b32 s64, s64, 8
    v_lshl_add_u32 v{sc}, v0, 2, s64
    """.format(w=w8_s, PHI=PHI, ad=ad, ad1=ad + 1, ad2=ad + 2, ad3=ad + 3, m=m, sc=sc))
    def body():
        for j in range(4): a("ds_read_b128 %s, v%d" % (vr(P + 4 * j, 4), ad + j))
        a("ds_read_b32 v%d, v%d offset:%d" % (sc, sc, SM_RSTD))
        mx = m; mn = m + 2
        a.wait_lg_for(vset(P, 4))
        a("v_max3_f32 v%d, v%d, v%d, v%d" % (mx, P, P + 1, P + 2))
        a("v_min3_f32 v%d, v%d, v%d, v%d" % (mn, P, P + 1, P + 2))
        for i in range(3, 15, 2):
            a.wait_lg_for(vset(P + i, 2))
            a("v_max3_f32 v%d, v%d, v%d, v%d" % (mx, mx, P + i, P + i + 1))
            a("v_min3_f32 v%d, v%d, v%d, v%d" % (mn, mn, P + i, P + i + 1))
        a("v_max_f32 v%d, v%d, v%d" % (mx, mx, P + 15))
        a("v_min_f32 v%d, v%d, v%d" % (mn, mn, P + 15))
        a.wait_lg_for(vset(sc))
        a("v_mul_f32 v%d, 0x%x, v%d" % (sc, LOG2E, sc))
        a("v_mul_f32 v%d, v%d, v%d" % (mx, mx, sc))
        a("v_mul_f32 v%d, v%d, v%d" % (mn, mn, sc))
        for i in range(0, 16, 2):
            a("v_pk_fma_f32 %s, %s, %s, %s op_sel_hi:[1,0,0] neg_lo:[0,0,1] neg_hi:[0,0,1]" % (vr(E + i, 2), vr(P + i, 2), vr(sc, 2), vr(mx, 2)))
            a("v_pk_fma_f32 %s, %s, %s, %s op_sel_hi:[1,0,0] neg_lo:[1,0,0] neg_hi:[1,0,0]" % (vr(P + i, 2), vr(P + i, 2), vr(sc, 2), vr(mn, 2)))
        for i in range(16):
            a("v_exp_f32 v%d, v%d" % (E + i, E + i))
            a("v_exp_f32 v%d, v%d" % (P + i, P + i))
        s0 = m; s1 = m + 2; u0 = m + 4; u1 = m + 6
        for B, s, u in ((E, s0, u0), (P, s1, u1)):
            a("v_pk_add_f32 %s, %s, %s" % (vr(s, 2), vr(B, 2), vr(B + 2, 2)))
            a("v_pk_add_f32 %s, %s, %s" % (vr(u, 2), vr(B + 4, 2), vr(B + 6, 2)))
        for B, s, u in ((E, s0, u0), (P, s1, u1)):
            a("v_pk_add_f32 %s, %s, %s" % (vr(s, 2), vr(s, 2), vr(B + 8, 2)))
            a("v_pk_add_f32 %s, %s, %s" % (vr(u, 2), vr(u, 2), vr(B + 10, 2)))
        for B, s, u in ((E, s0, u0), (P, s1, u1)):
            a("v_pk_add_f32 %s, %s, %s" % (vr(s, 2), vr(s, 2), vr(B + 12, 2)))
            a("v_pk_add_f32 %s, %s, %s" % (vr(u, 2), vr(u, 2), vr(B + 14, 2)))
        for B, s, u in ((E, s0, u0), (P, s1, u1)):
            a("v_pk_add_f32 %s, %s, %s" % (vr(s, 2), vr(s, 2), vr(u, 2)))
        for s in (s0, s1): a("v_add_f32 v%d, v%d, v%d" % (s, s, s + 1))
        for s in (s0, s1): a("v_rcp_f32 v%d, v%d" % (s, s))
        for B, s, c0 in ((E, s0, 0), (P, s1, 2)):
            for i in range(0, 16, 2):
                a("v_pk_mul_f32 %s, %s, %s op_sel_hi:[1,0]" % (vr(B + i, 2), vr(B + i, 2), vr(s, 2)))
            for i in range(8):
                a("v_cvt_pk_bf16_f32 v%d, v%d, v%d" % (B + i, B + 2 * i, B + 2 * i + 1))
            a("ds_write_b128 v%d, %s" % (ad + c0, vr(B, 4)))
            a("ds_write_b128 v%d, %s" % (ad + c0 + 1, vr(B + 4, 4)))
    return body

def att_L():
    a = Asm("AL")
    a("L_ATT_L:")
    if O.lprio: a("s_setprio %d" % O.lprio)
    a("s_lshl_b32 s69, s57, 7")
    l_addr(a, 3072, 69)
    ls = LStream(a)
    RA = lambda s: 16 if s in (0, 7) else 256 - 32 * s
    RB = lambda s: 256 - 24 * (s + 1)
    for s in range(8): ls.add("A%d" % s, vset(RA(s), 32), (lambda s=s: stage_loads(a, RA(s), s, SWQ, 3072, [1024, 2048], False)))
    for s in range(8): ls.add("B%d" % s, vset(RB(s), 24), (lambda s=s: stage_loads(a, RB(s), s, SWQ, 3072, [0], False)))
    a("s_lshl_b32 s76, s60, 5")
    ls.pump()
    a("s_mov_b32 s65, s76")
    l_addr2(a)
    a("s_lshl_b32 s69, s60, 12\ns_add_u32 s69, s69, %d" % LSTG)
    pf_addr(a, 9, 10, 11, 69)
    a("s_mul_i32 s77, s60, 9")
    forder = (8, 7, 6, 5, 4, 3, 2, 1, 0)
    for j in forder: ls.add("F%d" % j, vset(FB + 16 * j, 16), (lambda j=j: pf_loads(a, j, 9, SW2, 77, j)))
    a("s_barrier")
    for s in range(8):
        stage_writes(a, RA(s), (s & 1) * SLOT_A, 2, False)
        a("s_waitcnt lgkmcnt(0)")
        ls.release("A%d" % s); ls.pump()
        if s == 0: stamp(a, 1)
        a("s_barrier")
        if s == 0: read_epoch(a, 15); stamp(a, 2)
    body = softmax_k(a, 16, 3)
    a("s_barrier")
    body()
    a("s_waitcnt lgkmcnt(0)\ns_barrier")
    stamp(a, 3)
    for s in range(8):
        stage_writes(a, RB(s), (s & 1) * SLOT_B, 1, False)
        a("s_waitcnt lgkmcnt(0)")
        ls.release("B%d" % s); ls.pump()
        a("s_barrier")
    assert not ls.q
    if O.stop == "p1":
        a("s_endpgm"); return a
    for j in forder: pf_stage(a, j, 10, 11)
    stamp(a, 4)
    a("s_branch L_P2L")
    return a

def rr(a, seqs):
    n = max(len(s) for s in seqs)
    for i in range(n):
        for s in seqs:
            if i < len(s): a(s[i])

def att_C():
    a = Asm("AC")
    a("L_ATT_C:")
    AK = 16; AV = 48; CSK = 80; CSV = 84; X = (88, 120); W = (152, 160); ONES = 168; G = 172; WP = 184; GA = 10
    a("""
    s_lshl_b32 s67, s57, 2
    s_add_u32 s67, s67, s60
    v_and_b32 v12, 15, v0
    v_lshlrev_b32 v12, 1, v12
    v_lshrrev_b32 v13, 4, v0
    v_lshl_or_b32 v12, v13, 7, v12
    s_lshl_b32 s64, s67, 9
    buffer_load_ushort v{w0}, v12, {SP}, s64 offen
    buffer_load_ushort v{w2}, v12, {SP}, s64 offen offset:32
    buffer_load_ushort v{w1}, v12, {SP}, s64 offen offset:64
    buffer_load_ushort v{w3}, v12, {SP}, s64 offen offset:96
    """.format(w0=WP, w1=WP + 1, w2=WP + 2, w3=WP + 3, SP=SPHI))
    c_start(a, 88)
    a("v_lshl_or_b32 v%d, v%d, 16, v%d\nv_lshl_or_b32 v%d, v%d, 16, v%d" % (WP, WP + 2, WP, WP + 1, WP + 3, WP + 1))
    x_addr(a, 1, 12, 0)
    w_base0(a, 12, 13)
    a("s_lshl_b32 s64, s60, 5\nv_xor_b32 v3, s64, v12\nv_add_u32 v3, 20480, v3")
    gather_addr(a, GA, 0)
    for i in range(AK, CSV + 4): a("v_mov_b32 v%d, 0" % i)
    for i in range(4): a("v_mov_b32 v%d, 0x3f803f80" % (ONES + i))
    stamp(a, 1)
    a("s_waitcnt lgkmcnt(0)\ns_barrier")
    read_epoch(a, 12)
    stamp(a, 2)
    def mk(slotsz, npart):
        def reads(slot, ks, st):
            r = []
            for p in range(npart):
                for h in range(2):
                    r.append("ds_read_b64_tr_b16 %s, v3 offset:%d" % (vr(W[st] + 4 * p + 2 * h, 2), slot * slotsz + p * 8192 + ks * 4096 + h * 512))
            for mt in range(8):
                r.append("ds_read_b128 %s, v%d offset:%d" % (vr(X[st] + 4 * mt, 4), 1 + ks, slot * slotsz + mt * 2048))
            return r
        def mfmas(st, tail):
            m = [((lambda: mfma32(a, CSK, W[st], ONES)), vset(W[st], 4))]
            if npart == 2: m.append(((lambda: mfma32(a, CSV, ONES, W[st] + 4)), vset(W[st] + 4, 4)))
            for mt in range(8):
                m.append(((lambda mt=mt: mfma32(a, AK + 4 * mt, W[st], X[st] + 4 * mt)), vset(W[st], 4) | vset(X[st] + 4 * mt, 4)))
                if npart == 2: m.append(((lambda mt=mt: mfma32(a, AV + 4 * mt, X[st] + 4 * mt, W[st] + 4)), vset(W[st] + 4, 4) | vset(X[st] + 4 * mt, 4)))
            return m
        return reads, mfmas
    reads, mfmas = mk(SLOT_A, 2)
    gemm_loop(a, "ACA", reads, mfmas, {O.gather_it_att: lambda: gather_issue(a, G, GA, 2)}, False)
    for fn, _ in mfmas(1, True): fn()
    gather_check(a, G, GA, 2, 0, 13)
    stamp(a, 3)
    MEAN = 88
    a("v_and_b32 v13, 15, v0\nv_lshlrev_b32 v14, 2, v13")
    for mt in range(8): a("ds_read_b32 v%d, v14 offset:%d" % (MEAN + 2 * mt, SM_MEAN + 64 * mt))
    a("""
    v_lshlrev_b32 v4, 6, v13
    v_bfe_u32 v12, v0, 2, 1
    v_lshlrev_b32 v12, 1, v12
    v_bfe_u32 v13, v0, 3, 1
    v_or_b32 v12, v12, v13
    v_lshrrev_b32 v13, 4, v0
    v_xor_b32 v12, v12, v13
    v_lshl_or_b32 v4, v12, 4, v4
    s_lshl_b32 s64, s60, 13
    s_add_u32 s64, s64, %d
    v_add_u32 v4, s64, v4
    v_lshlrev_b32 v5, 4, v13
    """ % PHI)
    KB = 104
    PT = 120
    def fold_T(A, mt):
        a.wait_lg_for(vset(MEAN + 2 * mt))
        for h in (0, 2):
            a("v_pk_fma_f32 %s, %s, %s, %s op_sel_hi:[1,0,1] neg_lo:[0,1,0] neg_hi:[0,1,0]" % (vr(A + h, 2), vr(CSK + h, 2), vr(MEAN + 2 * mt, 2), vr(A + h, 2)))
        for h in (0, 1): a("v_cvt_pk_bf16_f32 v%d, v%d, v%d" % (KB + 2 * mt + h, A + 2 * h, A + 2 * h + 1))
    for mt in range(8):
        fold_T(AK + 4 * mt, mt)
        if mt >= 1: mfma16(a, PT + 4 * (mt - 1), WP, KB + 2 * (mt - 1), "0")
        if mt >= 3: a("ds_write_b128 v4, %s offset:%d" % (vr(PT + 4 * (mt - 3), 4), 1024 * (mt - 3)))
    mfma16(a, PT + 28, WP, KB + 14, "0")
    body = softmax_k(a, 192, 3)
    for mt in range(5, 8): a("ds_write_b128 v4, %s offset:%d" % (vr(PT + 4 * mt, 4), 1024 * mt))
    a("s_waitcnt lgkmcnt(0)\ns_barrier")
    body()
    VF = 16; MR = 120
    for mt in range(8):
        b = MR + 8 * (mt & 3)
        if mt % 4 == 0:
            for k in range(4):
                a("ds_read_b128 %s, v5 offset:%d" % (vr(MR + 8 * k, 4), SM_MEAN + 64 * (mt + k)))
                a("ds_read_b128 %s, v5 offset:%d" % (vr(MR + 8 * k + 4, 4), SM_RSTD + 64 * (mt + k)))
        A = AV + 4 * mt
        a.wait_lg_for(vset(b, 8))
        for h in (0, 2):
            a("v_pk_fma_f32 %s, %s, %s, %s op_sel_hi:[1,0,1] neg_lo:[0,1,0] neg_hi:[0,1,0]" % (vr(A + h, 2), vr(b + h, 2), vr(CSV, 2), vr(A + h, 2)))
        for h in (0, 2):
            a("v_pk_mul_f32 %s, %s, %s" % (vr(A + h, 2), vr(A + h, 2), vr(b + 4 + h, 2)))
        for h in (0, 1): a("v_cvt_pk_bf16_f32 v%d, v%d, v%d" % (VF + 2 * mt + h, A + 2 * h, A + 2 * h + 1))
    a("""
    v_lshrrev_b32 v12, 2, v0
    v_lshlrev_b32 v6, 6, v12
    v_bfe_u32 v12, v0, 4, 1
    v_lshlrev_b32 v12, 1, v12
    v_lshrrev_b32 v13, 5, v0
    v_or_b32 v12, v12, v13
    v_bfe_u32 v13, v0, 1, 1
    v_xor_b32 v12, v12, v13
    v_lshl_or_b32 v6, v12, 4, v6
    v_and_b32 v13, 1, v0
    v_lshl_or_b32 v6, v13, 3, v6
    s_lshl_b32 s64, s60, 13
    s_add_u32 s64, s64, %d
    v_add_u32 v6, s64, v6
    v_xor_b32 v7, 32, v6
    """ % PHI)
    a("""
    s_lshl_b32 s68, s67, 4
    s_add_u32 s68, s68, s56
    s_lshl_b32 s68, s68, 10
    s_add_u32 s68, s68, {KVP}
    s_lshl_b32 s69, s67, 10
    s_lshl_b32 s64, s56, 1
    s_add_u32 s69, s69, s64
    s_add_u32 s69, s69, {ZT}
    v_lshlrev_b32 v8, 4, v0
    v_lshlrev_b32 v9, 5, v0
    """.format(KVP=KVP_OFF, ZT=ZT_OFF))
    a("s_waitcnt lgkmcnt(0)\ns_barrier")
    PF = 120; KV = 32
    for kk in range(4):
        for hf in range(2):
            for h in range(2):
                a("ds_read_b64_tr_b16 %s, v%d offset:%d" % (vr(PF + 8 * kk + 4 * hf + 2 * h, 2), 6 + hf, kk * 2048 + h * 1024))
    for kk in range(4):
        for hf in range(2):
            a.wait_lg_for(vset(PF + 8 * kk + 4 * hf, 4))
            mfma32(a, KV + 4 * hf, PF + 8 * kk + 4 * hf, VF + 4 * kk, "0" if kk == 0 else None)
            mfma32(a, KV + 8 + 4 * hf, ONES, PF + 8 * kk + 4 * hf, "0" if kk == 0 else None)
    Q = 48
    a("v_cmp_gt_u32 vcc, 16, v0")
    for i in range(4): a("v_cvt_pk_bf16_f32 v%d, v%d, v%d" % (Q + i, KV + 2 * i, KV + 2 * i + 1))
    a("buffer_store_dwordx4 %s, v8, %s, s68 offen sc1" % (vr(Q, 4), SWS))
    a("v_cndmask_b32 v%d, v%d, v%d, vcc" % (Q + 4, KV + 12, KV + 8))
    a("v_cvt_pk_bf16_f32 v%d, v%d, v%d" % (Q + 4, Q + 4, Q + 4))
    a("s_mov_b32 exec_hi, 0")
    a("buffer_store_short v%d, v9, %s, s69 offen sc1" % (Q + 4, SWS))
    a("s_mov_b64 exec, -1")
    stamp(a, 4)
    for i in list(range(AK, AK + 32)) + list(range(CSK, CSK + 4)): a("v_mov_b32 v%d, 0" % i)
    def kvflag():
        a("s_waitcnt vmcnt(0)")
        a("s_lshl_b32 s64, s67, 7\ns_lshl_b32 s65, s56, 2\ns_add_u32 s64, s64, s65\ns_add_u32 s64, s64, 0x%x" % FKV_OFF)
        a("v_mov_b32 v12, s62\nv_mov_b32 v13, 0")
        a("s_mov_b64 exec, 1")
        a("buffer_store_dword v12, v13, %s, s64 offen sc1" % SWS)
        a("s_mov_b64 exec, -1")
    a("s_barrier")
    reads, mfmas = mk(SLOT_B, 1)
    gemm_loop(a, "ACB", reads, mfmas, {O.kvflag_it: kvflag}, False)
    for fn, _ in mfmas(1, True): fn()
    a.vm = []
    stamp(a, 9)
    MEAN = 80 + 8
    for mt in range(8):
        a("ds_read_b32 v%d, v14 offset:%d" % (MEAN + 2 * mt, SM_MEAN + 64 * mt))
        a("ds_read_b32 v%d, v14 offset:%d" % (MEAN + 2 * mt + 1, SM_RSTD + 64 * mt))
    a("v_mov_b32 v104, v%d\nv_mov_b32 v105, v%d" % (WP, WP + 1))
    WP2 = 104
    for i in range(4): a("v_mov_b32 v%d, 0x3f803f80" % (108 + i))
    ONES2 = 108
    if O.stop != "p1":
        a("s_lshl_b32 s69, s60, 12\ns_add_u32 s69, s69, 53248")
        pf_addr(a, 1, 2, 4, 69)
        a("s_mov_b32 s79, s67")
        c_prefetch_loads(a, 1)
        a("s_mov_b32 s67, s79")
    PQ = 48
    for mt in range(8):
        A = AK + 4 * mt
        a.wait_lg_for(vset(MEAN + 2 * mt, 2))
        for h in (0, 2):
            a("v_pk_fma_f32 %s, %s, %s, %s op_sel_hi:[1,0,1] neg_lo:[0,1,0] neg_hi:[0,1,0]" % (vr(A + h, 2), vr(CSK + h, 2), vr(MEAN + 2 * mt, 2), vr(A + h, 2)))
        for h in (0, 1): a("v_cvt_pk_bf16_f32 v%d, v%d, v%d" % (PQ + 4 * mt + h, A + 2 * h, A + 2 * h + 1))
        a("v_mul_f32 v%d, 0x%x, v%d" % (MEAN + 2 * mt + 1, LOG2E, MEAN + 2 * mt + 1))
        if mt >= 1: mfma16(a, AK + 4 * (mt - 1), WP2, PQ + 4 * (mt - 1), "0")
    mfma16(a, AK + 28, WP2, PQ + 28, "0")
    def qsm(mt, t):
        P = AK + 4 * mt; N = PQ + 4 * mt; sc = MEAN + 2 * mt + 1
        x, y = t, t + 1
        def allred(op):
            return ["v_permlane16_swap_b32 v%d, v%d" % (x, y), "%s v%d, v%d, v%d" % (op, x, x, y), "v_mov_b32 v%d, v%d" % (y, x),
                    "v_permlane32_swap_b32 v%d, v%d" % (x, y), "%s v%d, v%d, v%d" % (op, x, x, y), "v_mov_b32 v%d, v%d" % (y, x),
                    "v_permlane16_swap_b32 v%d, v%d" % (x, y)]
        s = ["v_max3_f32 v%d, v%d, v%d, v%d" % (x, P, P + 1, P + 2), "v_max3_f32 v%d, -v%d, -v%d, -v%d" % (y, P, P + 1, P + 2),
             "v_max_f32 v%d, v%d, v%d" % (x, x, P + 3), "v_max_f32_e64 v%d, v%d, -v%d" % (y, y, P + 3)]
        s += allred("v_max_f32")
        s += ["v_mul_f32 v%d, v%d, v%d" % (x, x, sc), "v_mul_f32 v%d, v%d, v%d" % (y, y, sc)]
        for i in range(4):
            s.append("v_fma_f32 v%d, -v%d, v%d, -v%d" % (N + i, P + i, sc, y))
            s.append("v_fma_f32 v%d, v%d, v%d, -v%d" % (P + i, P + i, sc, x))
        for i in range(4):
            s.append("v_exp_f32 v%d, v%d" % (P + i, P + i))
            s.append("v_exp_f32 v%d, v%d" % (N + i, N + i))
        s += ["v_add_f32 v%d, v%d, v%d" % (x, P, P + 1), "v_add_f32 v%d, v%d, v%d" % (y, N, N + 1),
              "v_add_f32 v%d, v%d, v%d" % (x, x, P + 2), "v_add_f32 v%d, v%d, v%d" % (y, y, N + 2),
              "v_add_f32 v%d, v%d, v%d" % (x, x, P + 3), "v_add_f32 v%d, v%d, v%d" % (y, y, N + 3)]
        s += allred("v_add_f32")
        s += ["v_rcp_f32 v%d, v%d" % (x, x), "v_rcp_f32 v%d, v%d" % (y, y)]
        for i in range(4):
            s.append("v_mul_f32 v%d, v%d, v%d" % (P + i, P + i, x))
            s.append("v_mul_f32 v%d, v%d, v%d" % (N + i, N + i, y))
        s += ["v_cvt_pk_bf16_f32 v%d, v%d, v%d" % (N + 3, N + 2, N + 3), "v_cvt_pk_bf16_f32 v%d, v%d, v%d" % (N + 2, N, N + 1),
              "v_cvt_pk_bf16_f32 v%d, v%d, v%d" % (N, P, P + 1), "v_cvt_pk_bf16_f32 v%d, v%d, v%d" % (N + 1, P + 2, P + 3)]
        return s
    for g0 in (0, 4):
        rr(a, [qsm(g0 + i, 80 + 2 * i) for i in range(4)])
    if O.stop != "p1":
        for j in range(9): pf_stage(a, j, 2, 4)
    SP_ = 88; SN_ = 92
    a("""
    v_and_b32 v12, 15, v0
    v_lshrrev_b32 v13, 4, v0
    v_lshlrev_b32 v13, 2, v13
    v_sub_u32 v12, v12, v13
    v_mov_b32 v96, 0x3f80
    v_mov_b32 v97, 0x3f800000
    v_cmp_eq_u32 vcc, 0, v12
    v_cndmask_b32 v88, 0, v96, vcc
    v_cmp_eq_u32 vcc, 1, v12
    v_cndmask_b32 v88, v88, v97, vcc
    v_cmp_eq_u32 vcc, 2, v12
    v_cndmask_b32 v89, 0, v96, vcc
    v_cmp_eq_u32 vcc, 3, v12
    v_cndmask_b32 v89, v89, v97, vcc
    v_mov_b32 v90, 0
    v_mov_b32 v91, 0
    v_mov_b32 v92, 0
    v_mov_b32 v93, 0
    v_mov_b32 v94, v88
    v_mov_b32 v95, v89
    v_and_b32 v12, 15, v0
    v_lshlrev_b32 v13, 2, v12
    v_lshlrev_b32 v12, 5, v12
    v_lshrrev_b32 v14, 4, v0
    v_lshl_or_b32 v12, v14, 3, v12
    s_lshl_b32 s69, s67, 7
    s_add_u32 s69, s69, {FKV}
    s_lshl_b32 s68, s67, 14
    s_add_u32 s68, s68, {KVP}
    s_lshl_b32 s76, s67, 10
    s_add_u32 s76, s76, {ZT}
    """.format(FKV=FKV_OFF, KVP=KVP_OFF, ZT=ZT_OFF))
    flag_poll(a, 13, 69, 14, "all", sleep=1)
    stamp(a, 5)
    Z = 80
    a("buffer_load_dwordx2 %s, v12, %s, s76 offen sc1" % (vr(Z, 2), SWS))
    a("buffer_load_dwordx2 %s, v12, %s, s76 offen offset:512 sc1" % (vr(Z + 2, 2), SWS))
    KS = 96
    ZS = 84
    def gl(j, dst):
        a("s_add_u32 s64, s68, %d" % ((j * 1024) & ~4095))
        a("buffer_load_dwordx4 %s, v8, %s, s64 offen offset:%d sc1" % (vr(dst, 4), SWS, (j * 1024) & 4095))
    for j in range(8): gl(j, AK + 4 * j)
    a.wait_vm_for(vset(Z, 4))
    mfma16(a, ZS, Z, ONES2, "0")
    mfma16(a, 104, Z + 2, ONES2, "0")
    for j in range(16):
        d = AK + 4 * (j & 7)
        a.wait_vm_for(vset(d, 4))
        mfma32(a, KS, SP_, d, "0" if j == 0 else None)
        mfma32(a, KS + 4, SN_, d, "0" if j == 0 else None)
        if j < 8: gl(j + 8, d)
    ZA = 80; KA = 88
    a("v_cvt_pk_bf16_f32 v%d, v%d, v%d" % (ZA, ZS, ZS + 1))
    a("v_cvt_pk_bf16_f32 v%d, v%d, v%d" % (ZA + 1, ZS + 2, ZS + 3))
    a("v_cvt_pk_bf16_f32 v%d, v104, v105" % (ZA + 2))
    a("v_cvt_pk_bf16_f32 v%d, v106, v107" % (ZA + 3))
    for i in range(4): a("v_cvt_pk_bf16_f32 v%d, v%d, v%d" % (KA + i, KS + 2 * i, KS + 2 * i + 1))
    a("""
    s_mul_i32 s68, s56, {mb}
    s_lshr_b32 s64, s67, 1
    s_add_u32 s68, s68, s64
    s_add_u32 s68, s68, 56
    s_lshl_b32 s68, s68, 10
    s_add_u32 s68, s68, {H}
    s_and_b32 s64, s60, 1
    s_lshl_b32 s64, s64, 3
    s_add_u32 s68, s68, s64
    """.format(mb=8 * 72, H=H_OFF))
    def otiles(sc):
        DEN = [96, 100, 104, 108, 92, 84]
        for mt in range(8):
            mfma32(a, AK + 4 * mt, KA, PQ + 4 * mt, "0")
            mfma32(a, DEN[mt % 4], ZA, PQ + 4 * mt, "0")
            if mt >= 2: ofin(mt - 2, DEN[(mt - 2) % 4], sc)
        ofin(6, DEN[2], sc); ofin(7, DEN[3], sc)
        a("s_waitcnt vmcnt(0)")
        flag_store(a, 12, sc)
    def ofin(mt, D, sc):
        N = AK + 4 * mt
        a("v_add_f32 v%d, 0x358637bd, v%d" % (D, D))
        a("v_rcp_f32 v%d, v%d" % (D, D))
        for h in (0, 2): a("v_pk_mul_f32 %s, %s, %s op_sel_hi:[1,0]" % (vr(N + h, 2), vr(N + h, 2), vr(D, 2)))
        for h in (0, 1): a("v_cvt_pk_bf16_f32 v%d, v%d, v%d" % (N + h, N + 2 * h, N + 2 * h + 1))
        a("s_add_u32 s64, s68, %d" % (mt * 73728))
        a("buffer_store_dwordx2 %s, v8, %s, s64 offen%s" % (vr(N, 2), SWS, sc))
    a("s_cmp_eq_u32 s63, 0\ns_cbranch_scc1 L_AO_S")
    sl, sv = list(a.lg), list(a.vm)
    otiles("")
    a("s_branch L_AO_D")
    a("L_AO_S:")
    a.lg, a.vm = sl, sv
    otiles(" sc1")
    a("L_AO_D:")
    if O.stop == "p1":
        a("s_endpgm"); return a
    a("s_branch L_P2C")
    return a

def main():
    p = Asm("P"); prologue(p)
    parts = [p, mlp_C(0), mlp_C(1), mlp_L(), att_C(), att_L()]
    c = Asm("P2C"); c("L_P2C:"); c("s_waitcnt lgkmcnt(0)"); p2_C(c); c("s_endpgm")
    l = Asm("P2L"); l("L_P2L:"); l("s_waitcnt lgkmcnt(0)"); p2_L(l)
    parts += [c, l]
    body = "".join(x.text() for x in parts) + "L_END:\n"
    open(sys.argv[1], "w").write(wrap(body, 256, 512, LDS_BYTES))

main()
```

```python
import re
NAME = "parallel_sum__linear_kernel_hedgehog__dense_activation_relu__prompt"
HEADER_COMMENT = open("cdna_kernels/%s.s.ref" % NAME).read().split("; Override launch")[0]

_REG = re.compile(r"^(-|abs\()?([vsa])(?:(\d+)|\[(\d+):(\d+)\])\)?$")
def regs_of(tok):
    tok = tok.strip()
    if tok.startswith("-"): tok = tok[1:]
    if tok.startswith("abs(") or tok.startswith("|"):
        tok = tok.replace("abs(", "").replace(")", "").replace("|", "")
    if tok == "vcc": return {("s", 106), ("s", 107)}
    if tok == "exec": return {("s", 126), ("s", 127)}
    if tok == "m0": return {("s", 124)}
    if tok == "exec_lo": return {("s", 126)}
    if tok == "exec_hi": return {("s", 127)}
    if tok == "vcc_lo": return {("s", 106)}
    if tok == "vcc_hi": return {("s", 107)}
    m = re.match(r"^([vsa])(?:(\d+)|\[(\d+):(\d+)\])$", tok)
    if not m: return set()
    f = m.group(1)
    if m.group(2) is not None: return {(f, int(m.group(2)))}
    return {(f, i) for i in range(int(m.group(3)), int(m.group(4)) + 1)}

TRANS = ("v_exp_f32", "v_log_f32", "v_rcp_f32", "v_rsq_f32", "v_sqrt_f32", "v_sin_f32", "v_cos_f32")

class Ins:
    __slots__ = ("text", "mn", "kind", "dst", "src", "passes", "srcc", "n", "dpp", "wide")
    def __init__(self, text):
        self.text = text
        t = text.split(";")[0].strip()
        parts = t.split(None, 1)
        self.mn = mn = parts[0]
        rest = parts[1] if len(parts) > 1 else ""
        ops = [o.strip() for o in re.split(r",(?![^\[]*\])", rest)] if rest else []
        mods = ""
        if ops:
            sp = ops[-1].split(None, 1)
            ops[-1] = sp[0]
            if len(sp) > 1: mods = sp[1]
        self.dst = set(); self.src = set(); self.passes = 0; self.srcc = set(); self.n = 1
        self.dpp = ("dpp" in mn) or ("row_" in mods) or ("quad_perm" in mods)
        self.wide = False
        R = [regs_of(o) for o in ops]
        if mn.endswith(":"): self.kind = "label"
        elif mn.startswith("v_mfma"):
            self.kind = "mfma"; self.dst = R[0]; self.src = R[1] | R[2]; self.srcc = R[3]
            self.passes = 8 if ("32x32" in mn or "x4_f32" in mn) else 4
        elif mn.startswith("v_cmp"):
            self.kind = "valu"; self.dst = R[0]; self.src = set().union(*R[1:])
        elif mn.startswith("v_readfirstlane") or mn.startswith("v_readlane"):
            self.kind = "rdlane"; self.dst = R[0]; self.src = set().union(*R[1:])
        elif mn.startswith("v_permlane") or mn.startswith("v_swap"):
            self.kind = "permlane"; self.dst = R[0] | R[1]; self.src = R[0] | R[1]
        elif mn.startswith("v_"):
            self.kind = "trans" if any(mn.startswith(x) for x in TRANS) else "valu"
            self.dst = R[0]; self.src = set().union(*R[1:]) if len(R) > 1 else set()
            if mn.startswith(("v_fmac", "v_dot2c", "v_mac")): self.src |= R[0]
            if mn.startswith(("v_add_co", "v_addc_co", "v_sub_co")): self.dst |= R[1]
            if mn.startswith("v_cndmask") and len(ops) == 3: self.src |= regs_of("vcc")
            if self.dpp or "sdwa" in mn: self.src |= R[0]
            if "d16" in mn: self.src |= R[0]
        elif mn.startswith("ds_read") or mn.startswith("ds_bpermute") or mn.startswith("ds_swizzle") or mn.endswith("_rtn_u32") or mn.endswith("_rtn_f32"):
            self.kind = "ds"; self.dst = R[0]; self.src = set().union(*R[1:])
        elif mn.startswith("ds_"):
            self.kind = "ds"; self.src = set().union(*R)
        elif mn.startswith("buffer_load") or mn.startswith("global_load"):
            self.kind = "vmem"
            if " lds" in (" " + mods): self.src = set().union(*R)
            else:
                self.dst = R[0]; self.src = set().union(*R[1:])
                if "d16" in mn: self.src |= R[0]
        elif mn.startswith("buffer_store") or mn.startswith("global_store"):
            self.kind = "vmem"; self.src = set().union(*R); self.wide = ("x4" in mn or "x3" in mn)
            self.srcc = R[0] if mn.startswith("buffer") else R[1]
        elif mn.startswith("buffer_atomic") or mn.startswith("global_atomic"):
            self.kind = "vmem"; self.src = set().union(*R)
            if "sc0" in mods: self.dst = R[0]
        elif mn.startswith(("buffer_wbl2", "buffer_inv")): self.kind = "vmem"
        elif mn == "s_nop": self.kind = "nop"; self.n = int(ops[0], 0) + 1
        elif mn == "s_waitcnt": self.kind = "wait"
        elif mn.startswith("s_load") or mn.startswith("s_memtime") or mn.startswith("s_memrealtime"):
            self.kind = "smem"; self.dst = R[0]; self.src = set().union(*R[1:]) if len(R) > 1 else set()
        elif mn.startswith(("s_cbranch", "s_branch", "s_barrier", "s_endpgm", "s_sleep", "s_setprio")): self.kind = "ctl"
        elif mn.startswith("s_setpc"): self.kind = "ctl"; self.src = R[0]
        elif mn.startswith("s_cmp") or mn.startswith("s_bitcmp"): self.kind = "salu"; self.src = set().union(*R)
        elif mn.startswith("s_"):
            self.kind = "salu"; self.dst = R[0] if R else set(); self.src = set().union(*R[1:]) if len(R) > 1 else set()
            if "saveexec" in mn: self.dst |= regs_of("exec")
        else:
            raise ValueError("unknown instr " + text)

def need_ws(p, c):
    n = 0
    isv = lambda k: k in ("valu", "trans", "permlane", "rdlane")
    vd = {r for r in p.dst if r[0] in "va"}; sd = {r for r in p.dst if r[0] == "s"}
    if p.kind == "mfma":
        big = {4: 8, 8: 12}[p.passes]
        if c.kind == "mfma":
            if vd & c.src: n = max(n, big)
            if vd & c.srcc and not (c.srcc == p.dst and c.passes == p.passes): n = max(n, {4: 6, 8: 10}[p.passes])
            if vd & c.dst and not (vd & c.srcc): n = max(n, big)
        elif isv(c.kind) or c.kind in ("ds", "vmem"):
            if vd & (c.src | c.dst): n = max(n, big)
        if isv(c.kind) and (p.srcc & c.dst): n = max(n, {4: 3, 8: 7}[p.passes])
    if isv(p.kind):
        if c.kind == "mfma" and vd & (c.src | c.srcc): n = max(n, 2)
        if c.dpp and vd & c.src: n = max(n, 2)
        if c.kind == "permlane" and vd & c.src: n = max(n, 2)
        if c.kind == "rdlane" and vd & c.src: n = max(n, 1)
        if p.kind == "trans" and isv(c.kind) and c.kind != "trans" and vd & (c.src): n = max(n, 1)
        if p.kind == "trans" and c.kind in ("mfma",) and vd & (c.src|c.srcc): n = max(n, 2)
        if "sdwa" in p.mn and isv(c.kind) and vd & (c.src | c.dst): n = max(n, 1)
        if sd:
            if c.kind == "vmem" and sd & c.src: n = max(n, 5)
            if isv(c.kind) and sd & c.src: n = max(n, 4 if c.kind == "rdlane" else 2)
            if c.kind in ("salu", "ctl", "smem") and sd & c.src: n = max(n, 1)
            if ("s", 126) in sd and (c.kind == "mfma" or c.dpp): n = max(n, 5)
    if p.kind == "vmem" and p.wide and (p.srcc & c.dst): n = max(n, 2)
    if p.kind == "salu" and ("s", 124) in p.dst and c.kind == "vmem": n = max(n, 1)
    if p.kind == "salu" and ("s", 126) in p.dst and c.dpp: n = max(n, 1)
    return n

class Asm:
    def __init__(self, name=""):
        self.ins = []; self.name = name
        self.vm = []
        self.lg = []
        self.check = True
    _lbl = [0]
    def label(self, base="L"):
        Asm._lbl[0] += 1
        return "%s_%d" % (base, Asm._lbl[0])
    def __call__(self, s):
        for l in s.split("\n"):
            l = l.strip()
            if not l or l.startswith(";"): continue
            self.emit(Ins(l))
    def mark(self, name):
        c = Ins("s_nop 0"); c.kind = "label"; c.text = "; @" + name; c.n = 0; c.mn = "@" + name
        self.ins.append(c)
    def dma(self, text, tag):
        c = Ins(text); self.emit(c)
        self.vm[-1] = ({("T", tag)}, c.text)
    def note_vm(self, n, tag):
        for i in range(n): self.vm.append(({("T", tag)}, "call:" + str(tag)))
        if len(self.vm) > 63: raise RuntimeError("[%s] more than 63 vmem outstanding" % self.name)
    def wait_tag(self, *tags):
        self.wait_vm_for({("T", t) for t in tags})
    def emit(self, c):
        if c.kind not in ("label", "nop", "wait"):
            dist = 0; need = 0
            for p in reversed(self.ins[-24:]):
                if p.kind == "label": continue
                w = need_ws(p, c)
                if w > dist: need = max(need, w - dist)
                dist += p.n
                if dist >= 12: break
            if need > 0:
                self.ins.append(Ins("s_nop %d" % (need - 1)))
        if self.check:
            touched = c.src | c.dst | c.srcc
            for q, nm in ((self.vm, "vmcnt"), (self.lg, "lgkmcnt")):
                for d, t in q:
                    if d & touched and not (c.kind == "vmem" and nm == "vmcnt" and not (d & (c.src|c.srcc)) and "d16" in c.mn):
                        raise RuntimeError("[%s] %s touches regs of outstanding %s op '%s'" % (self.name, c.text, nm, t))
            if c.kind == "vmem": self.vm.append((set(c.dst), c.text))
            if c.kind in ("ds", "smem"): self.lg.append((set(c.dst), c.text))
            if c.kind == "wait":
                m = re.search(r"vmcnt\((\d+)\)", c.text)
                if m:
                    n = int(m.group(1)); self.vm = self.vm[len(self.vm) - n:] if n < len(self.vm) else self.vm
                    if n == 0: self.vm = []
                m = re.search(r"lgkmcnt\((\d+)\)", c.text)
                if m:
                    n = int(m.group(1)); self.lg = self.lg[len(self.lg) - n:] if n < len(self.lg) else self.lg
                    if n == 0: self.lg = []
            if len(self.vm) > 63: raise RuntimeError("[%s] more than 63 vmem outstanding" % self.name)
        self.ins.append(c)
    def wait_vm_for(self, regs):
        last = -1
        for i, (d, t) in enumerate(self.vm):
            if d & regs: last = i
        if last >= 0: self("s_waitcnt vmcnt(%d)" % (len(self.vm) - 1 - last))
    def wait_lg_for(self, regs):
        last = -1
        for i, (d, t) in enumerate(self.lg):
            if d & regs: last = i
        if last >= 0: self("s_waitcnt lgkmcnt(%d)" % min(15, len(self.lg) - 1 - last))
    def text(self):
        return "".join((i.text + "\n") if i.kind == "label" else ("    " + i.text + "\n") for i in self.ins)

def vr(a, n=1):
    return "v%d" % a if n == 1 else "v[%d:%d]" % (a, a + n - 1)
def vset(a, n=1):
    return {("v", i) for i in range(a, a + n)}

def wrap(body, grid, block, lds, vgpr=256, sgpr=102, accum=None, name=None):
    name = name or NAME + "_kernel"
    accum = accum if accum is not None else ((vgpr + 3) // 4) * 4
    return (HEADER_COMMENT +
      "; @launch grid=(%d,1,1) block=(%d,1,1) lds=%d\n" % (grid, block, lds) +
      '.amdgcn_target "amdgcn-amd-amdhsa--gfx950"\n.text\n.globl %s\n.p2align 8\n.type %s,@function\n%s:\n' % (name, name, name) +
      body + "    s_endpgm\n" +
      '.section .rodata,"a"\n.p2align 6\n.amdhsa_kernel %s\n' % name +
      "  .amdhsa_next_free_vgpr %d\n  .amdhsa_next_free_sgpr %d\n  .amdhsa_accum_offset %d\n" % (vgpr, sgpr, accum) +
      "  .amdhsa_group_segment_fixed_size 0\n  .amdhsa_kernarg_size 80\n  .amdhsa_user_sgpr_count 2\n  .amdhsa_user_sgpr_kernarg_segment_ptr 1\n  .amdhsa_system_sgpr_workgroup_id_x 1\n" +
      "  .amdhsa_float_denorm_mode_32 3\n  .amdhsa_float_denorm_mode_16_64 3\n" +
      ".end_amdhsa_kernel\n")
```

```python
import sys, subprocess, re, os
sys.path.insert(0, "work")
from asmlib import *

class O:
    ws_base = 0
    mimic = 1
    rot = 1
    stamps = 0
    force_slow = 0
    spin = 40000
    lprio = 2
    stop = ""
    warm = 1
    cpf = 1
    stride = 240
    hsc = 1
    psleep = 1
    dbg = ""
    tailv = 2
    bpos = 3
    early = 2
for arg in sys.argv[2:]:
    k, v = arg.split("=")
    setattr(O, k, int(v, 0) if isinstance(getattr(O, k), int) else v)

H_OFF = O.ws_base
STAT_OFF = H_OFF + 0x900000
XCC_OFF = STAT_OFF + 0x8000
FLAG_OFF = XCC_OFF + 0x1000
KVG_OFF = H_OFF + 0x910000
CSP_OFF = KVG_OFF + 0x100000
STAMP_OFF = CSP_OFF + 0x80000
SLOT = 45056
RB0 = 4096
SM_EP = 0; SM_FAST = 4; SM_OWN = 64
SM_MEAN = 256; SM_RSTD = 768; SM_CS = 1280
CBUF = RB0
LBUF = RB0 + 2 * SLOT
LDS_BYTES = 163840
assert LBUF + 3 * 16384 >= RB0 + 3 * SLOT and LBUF + 4 * 16384 <= LDS_BYTES
SX, SWQ, SW2, SWO, SWS, SDBG, SOUT, SPHI, SW1, SWL = ["s[%d:%d]" % (i, i + 3) for i in (24, 28, 32, 36, 40, 44, 48, 52, 72, 76)]
LOG2E = 0x3fb8aa3b
FB = 112
HS = " sc1" if O.hsc else ""

NSTAMP = 20
def stamp(a, k, lvl=1):
    if O.stamps != lvl and not (O.stamps and k == 0): return
    a("s_waitcnt lgkmcnt(0)")
    a("s_memrealtime s[100:101]")
    a("s_waitcnt lgkmcnt(0)")
    a("s_mov_b32 s%d, s100" % (80 + k))

def stamps_out(a, vt, vt2):
    if not O.stamps: return
    a("v_mov_b32 v%d, 0" % vt)
    for k in range(NSTAMP):
        a("v_writelane_b32 v%d, s%d, %d" % (vt, 80 + k, k))
    a("v_lshlrev_b32 v%d, 2, v0" % vt2)
    a("s_lshl_b32 s64, s2, 3\ns_add_u32 s64, s64, s3\ns_lshl_b32 s64, s64, 7\ns_add_u32 s64, s64, 0x%x" % STAMP_OFF)
    a("s_mov_b32 exec_hi, 0")
    a("buffer_store_dword v%d, v%d, %s, s64 offen" % (vt, vt2, SWS))
    a("s_mov_b64 exec, -1")

def mfma32(a, d, A, B, c=None):
    a("v_mfma_f32_16x16x32_bf16 %s, %s, %s, %s" % (vr(d, 4), vr(A, 4), vr(B, 4), vr(d, 4) if c is None else c))
def mfma16(a, d, A, B, c=None):
    a("v_mfma_f32_16x16x16_bf16 %s, %s, %s, %s" % (vr(d, 4), vr(A, 2), vr(B, 2), vr(d, 4) if c is None else c))

def spin_tail(a, loop, done, sleep):
    a("s_sub_u32 s70, s70, 1")
    a("s_cbranch_scc1 %s" % done)
    a("s_sleep %d" % sleep)
    a("s_branch %s" % loop)

def flag_poll(a, vaddr, soff, vt, half, mask_s):
    L = a.label("FP"); D = a.label("FPD")
    a("s_mov_b32 s70, %d" % O.spin)
    a(L + ":")
    a("buffer_load_dword v%d, v%d, %s, s%d offen sc1" % (vt, vaddr, SWS, soff))
    a("s_waitcnt vmcnt(0)")
    a("v_cmp_eq_u32 vcc, s62, v%d" % vt)
    a("s_and_b32 s71, vcc_%s, s%d" % (half, mask_s))
    a("s_cmp_eq_u32 s71, s%d" % mask_s)
    a("s_cbranch_scc1 %s" % D)
    spin_tail(a, L, D, O.psleep)
    a(D + ":")

def warm(a, chain, nsplit, sel="s60"):
    if not O.warm: return
    a.mark("nostub_begin")
    a("s_mov_b64 exec, 0")
    if nsplit == 1:
        a("s_call_b64 s[10:11], L_W_%s_0" % chain)
    else:
        D = a.label("WD")
        for k in range(nsplit):
            N = a.label("WN")
            if k < nsplit - 1: a("s_cmp_lg_u32 %s, %d\ns_cbranch_scc1 %s" % (sel, k, N))
            a("s_call_b64 s[10:11], L_W_%s_%d" % (chain, k))
            if k < nsplit - 1: a("s_branch %s\n%s:" % (D, N))
        a(D + ":")
    a("s_mov_b64 exec, -1")
    a.mark("nostub_end")
    CHAIN_SPLIT[chain] = nsplit
CHAIN_SPLIT = {}
def warm2(a, ca, cm):
    if not O.warm: return
    M = a.label("WM"); D = a.label("WE")
    a("s_cmp_ge_u32 s57, 8\ns_cbranch_scc1 %s" % M)
    warm(a, ca, 4)
    a("s_branch %s\n%s:" % (D, M))
    warm(a, cm, 4)
    a(D + ":")

def interleave(a, mf, rd, extra=()):
    rd = list(rd) + list(extra)
    for fn, regs in mf:
        a.wait_lg_for(regs)
        fn()
        if rd: a(rd.pop(0))
    for r in rd: a(r)

def gemm_loop(a, name, reads, mfmas, aregs):
    for r in reads(0, 0): a(r)
    pre = list(a.lg)
    a("s_mov_b32 s66, 0\ns_mov_b32 s67, %d\ns_mov_b32 s68, %d\ns_mov_b32 s69, %d\ns_cmp_eq_u32 s66, 7" % (SLOT, SLOT, -2 * SLOT & 0xffffffff))
    a("s_branch L_%s_MID" % name)
    a("L_%s_TOP:" % name)
    a.lg = []
    interleave(a, mfmas(1), reads(0, 0), ["s_mov_b32 s64, s67", "s_mov_b32 s67, s68", "s_mov_b32 s68, s69", "s_mov_b32 s69, s64", "s_add_u32 s66, s66, 1", "s_cmp_eq_u32 s66, 7"])
    a("L_%s_MID:" % name)
    a.lg = pre
    upd = ["v_add_u32 v%d, s67, v%d" % (r, r) for r in aregs]
    if "noadd" in O.dbg: upd = []
    nb = O.bpos
    upd = upd[:nb] + ["s_nop 0"] * 0
    rest = ["v_add_u32 v%d, s67, v%d" % (r, r) for r in aregs][nb:] if "noadd" not in O.dbg else []
    if O.stamps == 2:
        bar = "s_waitcnt lgkmcnt(0)\ns_memtime s[96:97]\ns_waitcnt lgkmcnt(0)\ns_barrier\ns_memtime s[98:99]\ns_waitcnt lgkmcnt(0)\ns_sub_u32 s98, s98, s96\ns_add_u32 s81, s81, s98\ns_cmp_eq_u32 s66, 0\ns_cselect_b32 s82, s96, s82\ns_cmp_eq_u32 s66, 6\ns_cselect_b32 s83, s96, s83\ns_cmp_eq_u32 s66, 7"
    else: bar = "s_waitcnt lgkmcnt(0)\ns_barrier"
    pad = [None] * max(0, nb - len(upd))
    rd = list(reads(1, 1)) + upd + pad + [bar] + rest
    for fn, regs in mfmas(0):
        a.wait_lg_for(regs)
        fn()
        if rd:
            r = rd.pop(0)
            if r: a(r)
    assert not rd
    a("s_cbranch_scc0 L_%s_TOP" % name)
    a("L_%s_TAIL:" % name)

def w_base0(a, d, t):
    a("""
    v_lshrrev_b32 v{t}, 4, v0
    v_lshlrev_b32 v{d}, 10, v{t}
    v_and_b32 v{t}, 1, v{t}
    v_lshl_or_b32 v{d}, v{t}, 6, v{d}
    v_bfe_u32 v{t}, v0, 2, 2
    v_lshl_or_b32 v{d}, v{t}, 7, v{d}
    v_bfe_u32 v{t}, v0, 3, 1
    v_lshl_or_b32 v{d}, v{t}, 5, v{d}
    v_and_b32 v{t}, 3, v0
    v_lshl_or_b32 v{d}, v{t}, 3, v{d}
    """.format(d=d, t=t))

def x_addr(a, d, t, base_s):
    a("""
    v_and_b32 v{t}, 15, v0
    v_lshlrev_b32 v{d}, 7, v{t}
    v_lshrrev_b32 v{t}, 1, v{t}
    v_lshrrev_b32 v{e}, 4, v0
    v_xor_b32 v{t}, v{t}, v{e}
    v_lshl_or_b32 v{d}, v{t}, 4, v{d}
    v_add_u32 v{d}, {rb}, v{d}
    v_xor_b32 v{e}, 64, v{d}
    """.format(d=d, t=t, e=d + 1, rb=base_s))

def zero_regs(a, lo, n, z):
    for i in range(4): a("v_mov_b32 v%d, 0" % (z + i))
    for r in range(lo, lo + n, 16):
        a("v_mfma_f32_32x32x16_bf16 %s, %s, %s, 0" % (vr(r, 16), vr(z, 4), vr(z, 4)))

def pf_addr(a, area):
    a("""
    s_lshl_b32 s21, s60, 12
    s_add_u32 s21, s21, {area}
    v_lshrrev_b32 v12, 3, v0
    v_lshlrev_b32 v8, 10, v12
    v_and_b32 v12, 7, v0
    v_lshrrev_b32 v13, 4, v0
    v_lshlrev_b32 v13, 1, v13
    v_xor_b32 v12, v12, v13
    v_lshl_or_b32 v8, v12, 4, v8
    s_lshl_b32 s64, s59, 7
    v_add_u32 v8, s64, v8
    v_add_u32 v9, 7168, v8
    v_add_u32 v10, 14336, v8
    v_add_u32 v11, 21504, v8
    v_lshrrev_b32 v13, 2, v0
    v_lshlrev_b32 v12, 7, v13
    v_bfe_u32 v13, v0, 3, 2
    v_lshl_or_b32 v12, v13, 5, v12
    v_and_b32 v13, 3, v0
    v_lshl_or_b32 v12, v13, 3, v12
    v_add_u32 v12, s21, v12
    v_xor_b32 v13, 32, v12
    v_xor_b32 v14, 64, v12
    v_xor_b32 v15, 96, v12
    """.format(area=area))

def pf_dma(a, srd, ks_s, ks_add, buf, tag):
    a("s_add_u32 m0, s21, %d" % (16384 * buf))
    a("s_add_u32 s64, s%d, %d\ns_lshl_b32 s64, s64, 15" % (ks_s, ks_add))
    for i in range(4):
        a.dma("buffer_load_dwordx4 v%d, %s, s64 offen offset:%d lds" % (8 + i, srd, 1024 * i), tag)

def pf_read(a, j, buf):
    for t in range(4):
        a("ds_read_b64_tr_b16 %s, v%d offset:%d" % (vr(FB + 16 * j + 4 * t, 2), 12 + t, 16384 * buf))
        a("ds_read_b64_tr_b16 %s, v%d offset:%d" % (vr(FB + 16 * j + 4 * t + 2, 2), 12 + t, 16384 * buf + 2048))

def flag_publish(a, vt):
    S = a.label("FS"); D = a.label("FD")
    a("s_lshl_b32 s64, s56, 8\ns_lshl_b32 s65, s57, 4\ns_add_u32 s64, s64, s65\ns_lshl_b32 s65, s60, 2\ns_add_u32 s64, s64, s65\ns_add_u32 s64, s64, 0x%x" % FLAG_OFF)
    a("v_mov_b32 v%d, s62\nv_mov_b32 v%d, 0" % (vt, vt + 1))
    a("s_mov_b64 exec, 1")
    a("s_cmp_eq_u32 s63, 0\ns_cbranch_scc1 %s" % S)
    keep = list(a.vm)
    a("buffer_store_dword v%d, v%d, %s, s64 offen" % (vt, vt + 1, SWS))
    a("s_branch %s" % D)
    a(S + ":")
    a("buffer_wbl2 sc1\ns_waitcnt vmcnt(0)")
    a("buffer_store_dword v%d, v%d, %s, s64 offen sc1" % (vt, vt + 1, SWS))
    a(D + ":")
    a.vm = keep + [(set(), "flag")]
    a("s_mov_b64 exec, -1")

def read_sync(a, vt):
    a("v_mov_b32 v%d, 0" % vt)
    a("ds_read_b64 %s, v%d offset:%d" % (vr(vt, 2), vt, SM_EP))
    a.wait_lg_for(vset(vt, 2))
    a("v_readfirstlane_b32 s62, v%d\nv_readfirstlane_b32 s63, v%d" % (vt, vt + 1))

def entry():
    a = Asm("E")
    if O.cpf:
        a("s_getpc_b64 s[4:5]")
        a("v_lshlrev_b32 v2, 7, v0")
        a("v_min_u32 v2, @CODESZ@, v2")
        a("global_load_dword v255, v2, s[4:5]")
    for base, off in ((24, 0), (28, 8), (72, 40), (44, 64), (40, 72), (52, 16), (32, 48), (36, 24), (48, 56)):
        a("s_load_dwordx2 s[%d:%d], s[0:1], %d" % (base, base + 1, off))
    a("""
    s_cmp_ge_u32 s2, 256
    s_cbranch_scc1 L_END
    v_lshrrev_b32 v1, 6, v0
    v_and_b32 v0, 63, v0
    s_and_b32 s61, s2, 7
    v_readfirstlane_b32 s3, v1
    s_lshr_b32 s64, s2, 3
    s_lshr_b32 s65, s64, 4
    s_lshl_b32 s56, s61, 1
    s_add_u32 s56, s56, s65
    s_and_b32 s57, s64, 15
    s_lshr_b32 s65, s64, 3
    s_lshl_b32 s58, s61, 2
    s_add_u32 s58, s58, s65
    s_and_b32 s59, s64, 7
    s_and_b32 s60, s3, 3
    """)
    for base, size in ((24, 0x200000), (28, 1572864), (32, 1835008), (36, 524288), (40, 0x10000000), (44, 256), (48, 0x200000), (52, 16384), (72, 1835008)):
        a("s_mov_b32 s%d, 0x%x\ns_mov_b32 s%d, 0x20000" % (base + 2, size, base + 3))
    if O.stamps:
        for k in range(NSTAMP): a("s_mov_b32 s%d, 0" % (80 + k))
    a("s_cmp_lt_u32 s3, 4\ns_cbranch_scc1 L_C")
    if O.lprio: a("s_setprio %d" % O.lprio)
    a("""
    s_sub_u32 s67, s57, 8
    s_and_b32 s68, s67, 1
    s_mul_i32 s67, s67, 448
    s_lshl_b32 s69, s68, 6
    s_add_u32 s69, s69, s67
    s_cmp_eq_u32 s68, 0
    s_cselect_b32 s68, 384, 0
    s_add_u32 s68, s68, s67
    s_lshl_b32 s67, s57, 7
    s_cmp_lt_u32 s57, 8
    s_cselect_b32 s69, s67, s69
    s_movk_i32 s16, 3584
    s_movk_i32 s15, 128
    s_cselect_b32 s16, 3072, s16
    s_cselect_b32 s15, 1024, s15
    s_lshl_b32 s14, s16, 6
    s_mov_b32 s13, {RB0}
    s_lshl_b32 s19, s60, 12
    s_lshl_b32 s20, s60, 11
    s_add_u32 s20, s20, 16384
    s_lshl_b32 s18, s60, 10
    s_add_u32 s18, s18, 40960
    v_lshrrev_b32 v9, 3, v0
    v_and_b32 v10, 7, v0
    v_lshrrev_b32 v11, 4, v0
    s_lshl_b32 s64, s56, 7
    s_lshl_b32 s65, s60, 5
    s_add_u32 s65, s64, s65
    v_add_u32 v1, s65, v9
    v_lshlrev_b32 v1, 10, v1
    v_xor_b32 v12, v10, v11
    v_lshl_or_b32 v1, v12, 4, v1
    v_xor_b32 v2, 64, v1
    v_add_u32 v2, 7168, v2
    v_add_u32 v3, 14336, v1
    v_add_u32 v4, 14336, v2
    s_lshl_b32 s65, s60, 4
    v_add_u32 v12, s65, v9
    v_mul_u32_u24 v5, s16, v12
    v_and_b32 v11, 1, v11
    v_lshlrev_b32 v11, 1, v11
    v_xor_b32 v11, v11, v10
    v_lshl_add_u32 v5, v11, 4, v5
    v_add_u32 v5, s69, v5
    s_lshl_b32 s67, s16, 3
    s_sub_u32 s67, s67, 1024
    v_xor_b32 v6, 64, v5
    v_add_u32 v6, s67, v6
    v_lshrrev_b32 v12, 2, v0
    v_add_u32 v12, s65, v12
    v_mul_u32_u24 v7, 3584, v12
    v_lshrrev_b32 v12, 5, v0
    v_lshlrev_b32 v13, 1, v12
    v_and_b32 v11, 3, v0
    v_xor_b32 v13, v13, v11
    v_lshl_add_u32 v7, v13, 4, v7
    v_add_u32 v7, s68, v7
    s_lshl_b32 s65, s57, 3
    s_add_u32 s64, s64, s65
    s_lshl_b32 s65, s60, 1
    s_add_u32 s22, s64, s65
    """.format(RB0=RB0))
    if O.rot == 2: a("s_add_u32 s12, s61, s57\ns_and_b32 s12, s12, 7")
    elif O.rot == 3: a("s_and_b32 s12, s57, 7")
    elif O.rot == 4: a("s_lshr_b32 s12, s57, 1\ns_add_u32 s12, s12, s61\ns_and_b32 s12, s12, 7")
    else: a("s_mov_b32 s12, %s" % ("s61" if O.rot else "0"))
    a("s_mov_b32 s79, 0x20000")
    a("s_waitcnt lgkmcnt(0)")
    a("s_cmp_lt_u32 s57, 8\ns_cselect_b32 s76, s28, s72\ns_cselect_b32 s77, s29, s73\ns_cselect_b32 s78, s30, s74")
    stamp(a, 17, 2)
    def issue(s):
        if "nodma" in O.dbg and s > 2: return
        a("s_call_b64 s[6:7], L_ISSUE")
        a.note_vm(10, "S%d" % s)
    issue(0)
    stamp(a, 18, 2)
    a("s_branch L_LMAIN")
    a("L_ISSUE:")
    chk = a.check; a.check = False
    a("""
    s_lshl_b32 s64, s12, 7
    s_mul_i32 s65, s12, s14
    s_add_u32 m0, s13, s18
    s_cmp_lt_u32 s57, 8
    s_cbranch_scc1 L_IS1
    buffer_load_dwordx4 v7, {W}, s65 offen lds
    L_IS1:
    s_add_u32 m0, s13, s19
    s_add_u32 s12, s12, 1
    buffer_load_dwordx4 v1, {X}, s64 offen lds
    buffer_load_dwordx4 v2, {X}, s64 offen offset:1024 lds
    buffer_load_dwordx4 v3, {X}, s64 offen offset:2048 lds
    buffer_load_dwordx4 v4, {X}, s64 offen offset:3072 lds
    s_add_u32 m0, s13, s20
    s_and_b32 s12, s12, 7
    buffer_load_dwordx4 v5, {W}, s65 offen lds
    buffer_load_dwordx4 v6, {W}, s65 offen offset:1024 lds
    s_add_u32 m0, m0, 8192
    s_add_u32 s65, s65, s15
    buffer_load_dwordx4 v5, {W}, s65 offen lds
    buffer_load_dwordx4 v6, {W}, s65 offen offset:1024 lds
    s_add_u32 m0, m0, 8192
    s_add_u32 s65, s65, s15
    buffer_load_dwordx4 v5, {W}, s65 offen lds
    buffer_load_dwordx4 v6, {W}, s65 offen offset:1024 lds
    s_add_u32 s13, s13, {SLOT}
    s_cmp_eq_u32 s13, {END}
    s_cselect_b32 s13, {RB0}, s13
    s_setpc_b64 s[6:7]
    """.format(W=SWL, X=SX, SLOT=SLOT, END=RB0 + 3 * SLOT, RB0=RB0))
    a.check = chk
    a("L_LMAIN:")
    CA = 72; CF = 80; CSEL = 96; CD = 56
    EPV = 60; GA = 62; PA = 63; GR = 64; PG = 68
    w_base0(a, CA, CA + 1)
    a("""
    s_and_b32 s65, s56, 1
    s_lshl_b32 s64, s60, 13
    s_lshl_b32 s66, s65, 12
    s_add_u32 s64, s64, s66
    s_add_u32 s64, s64, {WB}
    v_add_u32 v{c0}, s64, v{c0}
    v_lshrrev_b32 v{c2}, 4, v0
    v_lshlrev_b32 v{c1}, 9, v{c2}
    v_and_b32 v{c2}, 1, v{c2}
    v_lshl_or_b32 v{c1}, v{c2}, 5, v{c1}
    v_bfe_u32 v{c2}, v0, 2, 2
    v_lshl_or_b32 v{c1}, v{c2}, 6, v{c1}
    v_and_b32 v{c2}, 3, v0
    v_lshl_or_b32 v{c1}, v{c2}, 3, v{c1}
    s_lshl_b32 s65, s65, 11
    s_add_u32 s65, s65, {HB}
    v_add_u32 v{c1}, s65, v{c1}
    s_cmp_eq_u32 s60, 3
    s_cselect_b64 vcc, -1, 0
    s_movk_i32 s64, 512
    s_cselect_b32 s64, 256, s64
    v_cndmask_b32 v{c0}, v{c0}, v{c1}, vcc
    v_xor_b32 v{c1}, 32, v{c0}
    v_xor_b32 v{c2}, 64, v{c0}
    v_xor_b32 v{c3}, 0x60, v{c0}
    v_cndmask_b32 v{c2}, v{c2}, v{c0}, vcc
    v_cndmask_b32 v{c3}, v{c3}, v{c1}, vcc
    """.format(WB=RB0 + 16384, HB=RB0 + 40960, c0=CA, c1=CA + 1, c2=CA + 2, c3=CA + 3))
    for t in range(4): a("v_add_u32 v%d, s64, v%d" % (CA + 4 + t, CA + t))
    a("v_bfe_u32 v%d, v0, 2, 2\nv_mov_b32 v%d, 0x3f803f80" % (CD, CD + 1))
    for t in range(4):
        a("v_cmp_eq_u32 vcc, %d, v%d" % (t, CD))
        a("v_cndmask_b32 v%d, 0, v%d, vcc" % (CSEL + 4 * t, CD + 1))
        for i in range(1, 4): a("v_mov_b32 v%d, v%d" % (CSEL + 4 * t + i, CSEL + 4 * t))
    a("v_lshrrev_b32 v%d, 5, v0\ns_lshl_b32 s64, s60, 4\nv_lshl_add_u32 v%d, v%d, 3, s64" % (GR, GR, GR))
    a("v_mov_b32 v%d, 0" % (EPV + 1))
    def ep_load(): a("buffer_load_dword v%d, v%d, %s, 0 offen sc1" % (EPV, EPV + 1, SDBG))
    issue(1)
    stamp(a, 0)
    ep_load()
    def bar(s):
        a.wait_tag("S%d" % s)
        if s == 0: stamp(a, 1)
        stamp(a, 1 + 2 * s, 2)
        a("s_barrier")
        if s == 0: stamp(a, 2)
        if s == 7: stamp(a, 3)
        stamp(a, 2 + 2 * s, 2)
    bar(0)
    for t in range(4):
        a("ds_read_b64_tr_b16 %s, v%d" % (vr(CF + 4 * t, 2), CA + t))
        a("ds_read_b64_tr_b16 %s, v%d" % (vr(CF + 4 * t + 2, 2), CA + 4 + t))
    a("ds_read_b64 %s, v%d offset:%d" % (vr(GR, 2), GR, SM_OWN))
    for t in range(4):
        a.wait_lg_for(vset(CF + 4 * t, 4))
        mfma32(a, CD, CSEL + 4 * t, CF + 4 * t, "0" if t == 0 else None)
    issue(2)
    a("""
    s_lshl_b32 s17, s57, 15
    s_lshl_b32 s64, s60, 9
    s_add_u32 s17, s17, s64
    s_add_u32 s17, s17, {CSP}
    s_lshl_b32 s64, s56, 11
    s_add_u32 s16, s17, s64
    v_lshlrev_b32 v112, 3, v0
    s_waitcnt lgkmcnt(0)
    v_mov_b32 v{pg}, v{gr}
    v_mov_b32 v{pg2}, v{gr1}
    s_getreg_b32 s64, hwreg(HW_REG_XCC_ID)
    v_writelane_b32 v{pg}, s64, 1
    v_writelane_b32 v{pg2}, s64, 1
    s_lshl_b32 s64, s56, 8
    s_add_u32 s64, s64, {XC}
    s_lshl_b32 s65, s57, 4
    s_add_u32 s64, s64, s65
    s_lshl_b32 s65, s22, 4
    s_add_u32 s65, s65, {ST}
    v_lshrrev_b32 v{pa}, 5, v0
    v_lshl_add_u32 v{pa}, v{pa}, 4, s65
    v_writelane_b32 v{pa}, s64, 1
    """.format(CSP=CSP_OFF, pg=PG, pg2=PG + 2, gr=GR, gr1=GR + 1, XC=XCC_OFF, ST=STAT_OFF, pa=PA))
    def publish():
        a("v_mov_b32 v%d, s62\nv_mov_b32 v%d, s62\nv_mov_b32 v%d, s62" % (PG + 1, PG + 3, CD + 1))
        a("buffer_store_dwordx2 %s, v112, %s, s16 offen sc1" % (vr(CD, 2), SWS))
        a("s_mov_b32 exec_lo, 3\ns_mov_b32 exec_hi, 1")
        a("buffer_store_dwordx4 %s, v%d, %s, 0 offen sc1" % (vr(PG, 4), PA, SWS))
        a("s_mov_b64 exec, -1")
    a.wait_vm_for(vset(EPV))
    a("v_readfirstlane_b32 s62, v%d" % EPV)
    a("s_cmp_eq_u32 s62, 0\ns_cbranch_scc1 L_NP1")
    keep = list(a.vm)
    publish()
    a("L_NP1:")
    a.vm = keep
    bar(1)
    issue(3)
    pf_addr(a, LBUF)
    a("s_mul_i32 s23, s60, 9")
    a("""
    s_lshl_b32 s64, s56, 11
    s_lshl_b32 s65, s60, 9
    s_add_u32 s64, s64, s65
    s_add_u32 s64, s64, {ST}
    v_lshl_add_u32 v{ga}, v0, 4, s64
    s_lshl_b32 s64, s56, 8
    s_add_u32 s64, s64, {XC}
    v_and_b32 v{t}, 15, v0
    v_lshl_add_u32 v{t}, v{t}, 4, s64
    v_cmp_gt_u32 vcc, 32, v0
    v_cndmask_b32 v{ga}, v{t}, v{ga}, vcc
    """.format(ST=STAT_OFF, XC=XCC_OFF, ga=GA, t=GR))
    bar(2)
    issue(4)
    L = a.label("EP"); D = a.label("EPD")
    a("s_cmp_lg_u32 s62, 0\ns_cbranch_scc1 L_NP2")
    keep = list(a.vm)
    a("s_mov_b32 s70, %d" % O.spin)
    a(L + ":")
    ep_load()
    a("s_waitcnt vmcnt(0)")
    a("v_readfirstlane_b32 s62, v%d" % EPV)
    a("s_cmp_lg_u32 s62, 0\ns_cbranch_scc1 %s" % D)
    spin_tail(a, L, D, 1)
    a(D + ":")
    publish()
    a("L_NP2:")
    a.vm = keep
    bar(3)
    issue(5)
    bar(4)
    issue(6)
    bar(5)
    issue(7)
    CG = 72
    def g_load():
        a("buffer_load_dwordx4 %s, v%d, %s, 0 offen sc1" % (vr(GR, 4), GA, SWS))
        for j in range(16):
            if j % 2 == 0: a("s_add_u32 s64, s17, %d" % (j * 2048))
            a("buffer_load_dwordx2 %s, v112, %s, s64 offen offset:%d sc1" % (vr(CG + 2 * j, 2), SWS, (j & 1) * 2048))
    bar(6)
    g_load()
    pf_dma(a, SW2, 23, 0, 3, "K0")
    bar(7)
    for j in (1, 2): pf_dma(a, SW2, 23, j, j - 1, "K%d" % j)
    L = a.label("GC"); D = a.label("GCD")
    a.wait_vm_for(vset(CG, 32))
    keep = list(a.vm)
    a("s_mov_b32 s70, %d" % O.spin)
    a(L + ":")
    TM = 40
    a("v_max_u32 v%d, v%d, v%d\nv_min_u32 v%d, v%d, v%d" % (TM, GR + 1, GR + 3, TM + 1, GR + 1, GR + 3))
    for j in range(0, 16, 2):
        a("v_max3_u32 v%d, v%d, v%d, v%d" % (TM, TM, CG + 2 * j + 1, CG + 2 * j + 3))
        a("v_min3_u32 v%d, v%d, v%d, v%d" % (TM + 1, TM + 1, CG + 2 * j + 1, CG + 2 * j + 3))
    a("v_cmp_eq_u32 vcc, s62, v%d\ns_mov_b64 s[64:65], vcc" % TM)
    a("v_cmp_eq_u32 vcc, s62, v%d\ns_and_b64 s[64:65], s[64:65], vcc" % (TM + 1))
    a("s_cmp_eq_u64 s[64:65], -1")
    a("s_cbranch_scc1 %s" % D)
    a("s_sub_u32 s70, s70, 1")
    a("s_cbranch_scc1 %s" % D)
    a("s_sleep 1")
    g_load()
    a("s_waitcnt vmcnt(0)")
    a("s_branch %s" % L)
    a(D + ":")
    a.vm = keep
    for j in range(0, 16, 2): a("v_add_f32 v%d, v%d, v%d" % (CG + 2 * j, CG + 2 * j, CG + 2 * j + 2))
    for j in range(0, 16, 4): a("v_add_f32 v%d, v%d, v%d" % (CG + 2 * j, CG + 2 * j, CG + 2 * j + 4))
    for j in (0, 8): a("v_add_f32 v%d, v%d, v%d" % (CG + 2 * j, CG + 2 * j, CG + 2 * j + 8))
    a("v_add_f32 v%d, v%d, v%d" % (CG, CG, CG + 16))
    a("s_lshl_b32 s64, s60, 8\nv_lshl_add_u32 v%d, v0, 2, s64" % TM)
    a("ds_write_b32 v%d, v%d offset:%d" % (TM, CG, SM_CS))
    a("v_readlane_b32 s64, v%d, 32" % GR)
    a("v_cmp_eq_u32 vcc, s64, v%d" % GR)
    a("s_cmp_eq_u32 vcc_hi, -1")
    a("s_cselect_b32 s63, %d, 0" % (0 if O.force_slow else 1))
    a("s_lshl_b32 s64, s60, 7\nv_lshl_add_u32 v%d, v0, 2, s64" % GA)
    a("v_mov_b32 v%d, s62\nv_mov_b32 v%d, s63\nv_mov_b32 v%d, 0" % (PG, PG + 1, PA))
    a("s_mov_b32 exec_hi, 0")
    a("ds_write_b32 v%d, v%d offset:%d" % (GA, GR, SM_MEAN))
    a("ds_write_b32 v%d, v%d offset:%d" % (GA, GR + 2, SM_RSTD))
    a("ds_write_b64 v%d, %s offset:%d" % (PA, vr(PG, 2), SM_EP))
    a("s_mov_b64 exec, -1")
    a("s_waitcnt lgkmcnt(0)")
    a("s_barrier")
    stamp(a, 19, 2)
    stamp(a, 10)
    pf_dma(a, SW2, 23, 3, 2, "K3")
    bufof = {0: 3, 1: 0, 2: 1, 3: 2, 4: 3, 5: 0, 6: 1, 7: 2, 8: 3}
    def stage(j):
        a.wait_tag("K%d" % j)
        pf_read(a, j, bufof[j])
        if j + 4 <= 8:
            a("s_waitcnt lgkmcnt(0)")
            pf_dma(a, SW2, 23, j + 4, bufof[j + 4], "K%d" % (j + 4))
    stage(0)
    a("s_cmp_lt_u32 s57, 8\ns_cbranch_scc1 L_LATT")
    sv, sl = list(a.vm), list(a.lg)
    warm(a, "C3", 4); stage(1); warm(a, "C4", 4); stage(2); warm(a, "C5", 4); stage(3)
    a("s_branch L_LP2")
    a("L_LATT:")
    a.vm, a.lg = sv, sl
    a("s_call_b64 s[8:9], L_SMX")
    a("s_barrier")
    stamp(a, 9)
    stage(1); stage(2); stage(3)
    a("s_call_b64 s[8:9], L_SMX")
    a("s_barrier")
    warm(a, "C5", 4); warm(a, "C4", 4); warm(a, "C3", 4)
    a("L_LP2:")
    for j in range(4, 9): stage(j)
    stamp(a, 4)
    if O.stop == "p1":
        stamps_out(a, 110, 111)
        a("s_endpgm"); return a
    p2_L(a)
    return a

XR = 176
def stats_sub():
    a = Asm("ST")
    a("L_STATS:")
    f = 184; t = 200
    a("s_waitcnt vmcnt(0)")
    for i in range(8):
        a("v_lshlrev_b32 v%d, 16, v%d" % (f + 2 * i, XR + i))
        a("v_and_b32 v%d, 0xffff0000, v%d" % (f + 2 * i + 1, XR + i))
    def reduce32(s, u):
        for n in (8, 4, 2, 1):
            a("v_add_f32_dpp v%d, v%d, v%d row_ror:%d row_mask:0xf bank_mask:0xf" % (s, s, s, n))
        a("v_mov_b32 v%d, v%d" % (u, s))
        a("v_permlane16_swap_b32 v%d, v%d" % (s, u))
        a("v_add_f32 v%d, v%d, v%d" % (s, s, u))
    s = t; u = t + 1
    for i in range(0, 8, 2): a("v_pk_add_f32 %s, %s, %s" % (vr(XR + i, 2), vr(f + 2 * i, 2), vr(f + 2 * i + 2, 2)))
    a("v_pk_add_f32 %s, %s, %s" % (vr(XR, 2), vr(XR, 2), vr(XR + 2, 2)))
    a("v_pk_add_f32 %s, %s, %s" % (vr(XR + 4, 2), vr(XR + 4, 2), vr(XR + 6, 2)))
    a("v_pk_add_f32 %s, %s, %s" % (vr(XR, 2), vr(XR, 2), vr(XR + 4, 2)))
    a("v_add_f32 v%d, v%d, v%d" % (s, XR, XR + 1))
    reduce32(s, u)
    mean = t + 2; rstd = t + 3
    a("v_mul_f32 v%d, 0x3b000000, v%d" % (mean, s))
    for i in range(0, 16, 2): a("v_pk_add_f32 %s, %s, %s op_sel_hi:[1,0] neg_lo:[0,1] neg_hi:[0,1]" % (vr(f + i, 2), vr(f + i, 2), vr(mean, 2)))
    a("v_pk_mul_f32 %s, %s, %s" % (vr(XR, 2), vr(f, 2), vr(f, 2)))
    a("v_pk_mul_f32 %s, %s, %s" % (vr(XR + 2, 2), vr(f + 2, 2), vr(f + 2, 2)))
    for i in range(4, 16, 4):
        a("v_pk_fma_f32 %s, %s, %s, %s" % (vr(XR, 2), vr(f + i, 2), vr(f + i, 2), vr(XR, 2)))
        a("v_pk_fma_f32 %s, %s, %s, %s" % (vr(XR + 2, 2), vr(f + i + 2, 2), vr(f + i + 2, 2), vr(XR + 2, 2)))
    a("v_pk_add_f32 %s, %s, %s" % (vr(XR, 2), vr(XR, 2), vr(XR + 2, 2)))
    a("v_add_f32 v%d, v%d, v%d" % (s, XR, XR + 1))
    reduce32(s, u)
    a("v_mul_f32 v%d, 0x3b000000, v%d" % (s, s))
    def rnd(r):
        a("v_cvt_pk_bf16_f32 v%d, v%d, v%d" % (r, r, r))
        a("v_lshlrev_b32 v%d, 16, v%d" % (r, r))
    if O.mimic: rnd(s); rnd(mean)
    a("v_add_f32 v%d, 0x3727c5ac, v%d" % (s, s))
    if O.mimic: rnd(s)
    a("v_sqrt_f32 v%d, v%d" % (s, s))
    if O.mimic: rnd(s)
    a("v_rcp_f32 v%d, v%d" % (rstd, s))
    a("v_lshrrev_b32 v%d, 5, v0\ns_lshl_b32 s64, s60, 4\nv_lshl_add_u32 v%d, v%d, 3, s64" % (u, u, u))
    a("ds_write_b64 v%d, %s offset:%d" % (u, vr(mean, 2), SM_OWN))
    a("s_waitcnt lgkmcnt(0)")
    a("s_setpc_b64 s[8:9]")
    return a

def softmax_sub():
    a = Asm("SMX")
    P = 16; E = 32; Q = 48; sc = 64; m = 66; ad = 1
    a("L_SMX:")
    a("""
    s_and_b32 s64, s3, 1
    s_lshl_b32 s65, s64, 14
    s_lshl_b32 s64, s64, 8
    v_lshl_add_u32 v5, v0, 2, s64
    s_lshr_b32 s64, s3, 1
    s_lshl_b32 s64, s64, 12
    s_add_u32 s64, s64, s65
    s_add_u32 s64, s64, {CB}
    v_lshlrev_b32 v1, 6, v0
    v_bfe_u32 v2, v0, 2, 1
    v_lshl_or_b32 v1, v2, 5, v1
    v_bfe_u32 v2, v0, 3, 1
    v_lshl_or_b32 v1, v2, 4, v1
    v_add_u32 v1, s64, v1
    v_xor_b32 v2, 16, v1
    v_xor_b32 v3, 32, v1
    v_xor_b32 v4, 48, v1
    ds_read_b32 v{sc}, v5 offset:{RS}
    s_waitcnt lgkmcnt(0)
    s_barrier
    """.format(CB=CBUF, sc=sc, RS=SM_RSTD))
    for j in range(4): a("ds_read_b128 %s, v%d" % (vr(P + 4 * j, 4), ad + j))
    a("v_mul_f32 v%d, 0x%x, v%d" % (sc, LOG2E, sc))
    mx = m; mn = m + 2
    a.wait_lg_for(vset(P, 4))
    a("v_max3_f32 v%d, v%d, v%d, v%d" % (mx, P, P + 1, P + 2))
    a("v_min3_f32 v%d, v%d, v%d, v%d" % (mn, P, P + 1, P + 2))
    for i in range(3, 15, 2):
        a.wait_lg_for(vset(P + i, 2))
        a("v_max3_f32 v%d, v%d, v%d, v%d" % (mx, mx, P + i, P + i + 1))
        a("v_min3_f32 v%d, v%d, v%d, v%d" % (mn, mn, P + i, P + i + 1))
    a("v_max_f32 v%d, v%d, v%d" % (mx, mx, P + 15))
    a("v_min_f32 v%d, v%d, v%d" % (mn, mn, P + 15))
    a("v_mul_f32 v%d, v%d, v%d" % (mx, mx, sc))
    a("v_mul_f32 v%d, v%d, v%d" % (mn, mn, sc))
    for i in range(0, 16, 2):
        a("v_pk_fma_f32 %s, %s, %s, %s op_sel_hi:[1,0,0] neg_lo:[0,0,1] neg_hi:[0,0,1]" % (vr(E + i, 2), vr(P + i, 2), vr(sc, 2), vr(mx, 2)))
        a("v_pk_fma_f32 %s, %s, %s, %s op_sel_hi:[1,0,0] neg_lo:[1,0,0] neg_hi:[1,0,0]" % (vr(P + i, 2), vr(P + i, 2), vr(sc, 2), vr(mn, 2)))
    for i in range(16):
        a("v_exp_f32 v%d, v%d" % (E + i, E + i))
        a("v_exp_f32 v%d, v%d" % (P + i, P + i))
    s0 = m; s1 = m + 2; u0 = m + 4; u1 = m + 6
    for B, s, u in ((E, s0, u0), (P, s1, u1)):
        a("v_pk_add_f32 %s, %s, %s" % (vr(s, 2), vr(B, 2), vr(B + 2, 2)))
        a("v_pk_add_f32 %s, %s, %s" % (vr(u, 2), vr(B + 4, 2), vr(B + 6, 2)))
    for o in (8, 12):
        for B, s, u in ((E, s0, u0), (P, s1, u1)):
            a("v_pk_add_f32 %s, %s, %s" % (vr(s, 2), vr(s, 2), vr(B + o, 2)))
            a("v_pk_add_f32 %s, %s, %s" % (vr(u, 2), vr(u, 2), vr(B + o + 2, 2)))
    for B, s, u in ((E, s0, u0), (P, s1, u1)):
        a("v_pk_add_f32 %s, %s, %s" % (vr(s, 2), vr(s, 2), vr(u, 2)))
    for s in (s0, s1): a("v_add_f32 v%d, v%d, v%d" % (s, s, s + 1))
    for s in (s0, s1): a("v_rcp_f32 v%d, v%d" % (s, s))
    for j in range(4):
        for B, s in ((E, s0), (P, s1)):
            for i in (0, 2):
                a("v_pk_mul_f32 %s, %s, %s op_sel_hi:[1,0]" % (vr(B + 4 * j + i, 2), vr(B + 4 * j + i, 2), vr(s, 2)))
        for k, B in enumerate((E, P)):
            for i in (0, 1):
                a("v_cvt_pk_bf16_f32 v%d, v%d, v%d" % (Q + 4 * j + 2 * k + i, B + 4 * j + 2 * i, B + 4 * j + 2 * i + 1))
        a("ds_write_b128 v%d, %s" % (ad + j, vr(Q + 4 * j, 4)))
    return a

def resid_load(a, vx, vt):
    a("""
    s_lshl_b32 s64, s58, 6
    s_lshr_b32 s65, s3, 1
    s_lshl_b32 s65, s65, 4
    s_add_u32 s64, s64, s65
    s_lshl_b32 s64, s64, 10
    s_lshl_b32 s65, s59, 7
    s_add_u32 s64, s64, s65
    s_and_b32 s65, s3, 1
    s_lshl_b32 s65, s65, 6
    s_add_u32 s64, s64, s65
    v_and_b32 v{t}, 15, v0
    v_lshlrev_b32 v{t}, 10, v{t}
    v_and_b32 v{x}, 48, v0
    v_add3_u32 v{t}, v{t}, v{x}, s64
    buffer_load_dwordx4 v[{x}:{x3}], v{t}, {SX}, 0 offen
    """.format(t=vt, x=vx, x3=vx + 3, SX=SX))

VX = 104; VO = 108
def final_sub():
    a = Asm("FIN")
    T = 16
    ad = 1; rs = 4; acc = T + 4; buf = T + 12
    a("L_FIN:")
    a("""
    v_and_b32 v{ad}, 15, v0
    v_lshlrev_b32 v{rs}, 2, v{ad}
    v_lshlrev_b32 v{ad}, 4, v{ad}
    v_bfe_u32 v{t}, v0, 4, 1
    v_lshl_or_b32 v{ad}, v{t}, 9, v{ad}
    v_lshrrev_b32 v{t}, 5, v0
    v_lshl_or_b32 v{ad}, v{t}, 10, v{ad}
    s_lshr_b32 s65, s3, 1
    s_lshl_b32 s64, s65, 14
    s_and_b32 s66, s3, 1
    s_lshl_b32 s66, s66, 11
    s_add_u32 s64, s64, s66
    v_add_u32 v{ad}, s64, v{ad}
    v_add_u32 v{ad1}, {LB}, v{ad}
    s_and_b32 s64, s58, 1
    s_lshl_b32 s64, s64, 8
    s_lshl_b32 s65, s65, 6
    s_add_u32 s64, s64, s65
    v_add_u32 v{rs}, s64, v{rs}
    ds_read_b32 v{rs}, v{rs} offset:{RS}
    s_waitcnt lgkmcnt(0)
    s_barrier
    """.format(ad=ad, ad1=ad + 1, rs=rs, t=3, LB=LBUF, RS=SM_RSTD))
    stamp(a, 7)
    for p in range(4):
        a("ds_read_b128 %s, v%d offset:%d" % (vr(buf + 8 * p, 4), ad + 1, p * 4096))
        a("ds_read_b128 %s, v%d offset:%d" % (vr(buf + 8 * p + 4, 4), ad + 1, p * 4096 + 256))
    for p in range(4, 8):
        a("ds_read_b128 %s, v%d offset:%d" % (vr(buf + 8 * p, 4), ad, (p - 4) * 4096 + CBUF))
        a("ds_read_b128 %s, v%d offset:%d" % (vr(buf + 8 * p + 4, 4), ad, (p - 4) * 4096 + 256 + CBUF))
    def padd(d, x, y):
        a.wait_lg_for(vset(x, 8) | vset(y, 8))
        for i in range(0, 8, 2): a("v_pk_add_f32 %s, %s, %s" % (vr(d + i, 2), vr(x + i, 2), vr(y + i, 2)))
    padd(acc, buf, buf + 8); padd(acc, acc, buf + 16); padd(acc, acc, buf + 24)
    a.wait_lg_for(vset(buf + 32, 8))
    for i in range(0, 8, 2):
        a("v_pk_fma_f32 %s, %s, %s, %s op_sel_hi:[1,0,1]" % (vr(acc + i, 2), vr(acc + i, 2), vr(rs, 2), vr(buf + 32 + i, 2)))
    padd(acc, acc, buf + 40); padd(acc, acc, buf + 48); padd(acc, acc, buf + 56)
    a("s_waitcnt vmcnt(0)")
    for i in range(4):
        a("v_lshlrev_b32 v%d, 16, v%d" % (buf + 2 * i, VX + i))
        a("v_and_b32 v%d, 0xffff0000, v%d" % (buf + 2 * i + 1, VX + i))
    padd(acc, acc, buf)
    for i in range(4): a("v_cvt_pk_bf16_f32 v%d, v%d, v%d" % (buf + 8 + i, acc + 2 * i, acc + 2 * i + 1))
    a("buffer_store_dwordx4 %s, v%d, %s, 0 offen" % (vr(buf + 8, 4), VO, SOUT))
    stamp(a, 8)
    stamps_out(a, 110, 111)
    return a

def p2_hbase(a, sd, ks_s, ks_add):
    a("s_mul_i32 s%d, s58, %d" % (sd, 4 * 72))
    a("s_add_u32 s%d, s%d, s%d" % (sd, sd, ks_s))
    a("s_add_u32 s%d, s%d, %d" % (sd, sd, ks_add))
    a("s_lshl_b32 s%d, s%d, 10" % (sd, sd))
    a("s_add_u32 s%d, s%d, 0x%x" % (sd, sd, H_OFF))

def hload(a, dst, vl, sbase, strip, k):
    off = strip * 73728 + k * 1024
    a("s_add_u32 s64, s%d, %d" % (sbase, off & ~4095))
    a("buffer_load_dwordx4 %s, v%d, %s, s64 offen offset:%d%s" % (vr(dst, 4), vl, SWS, off & 4095, HS))

def hflag_setup(a, vf):
    a("v_lshlrev_b32 v%d, 2, v0" % vf)
    a("s_lshl_b32 s69, s56, 8\ns_add_u32 s69, s69, 0x%x" % FLAG_OFF)
    a("s_and_b32 s64, s58, 1\ns_lshl_b32 s64, s64, 1\ns_lshl_b32 s67, 0x33333333, s64")

def p2_L(a):
    vl = 1; acc = 88; t = 2
    a.mark("chain P2L")
    resid_load(a, VX, VO)
    a("v_lshlrev_b32 v%d, 4, v0" % vl)
    p2_hbase(a, 68, 23, 0)
    hflag_setup(a, 3)
    a("v_add_u32 v%d, s21, v%d" % (t, vl))
    flag_poll(a, 3, 69, 4, "hi", 67)
    stamp(a, 5)
    buf = lambda s, k: 16 + 36 * (s & 1) + 4 * k
    for s in range(2):
        for k in range(9): hload(a, buf(s, k), vl, 68, s, k)
    for s in range(4):
        for k in range(9):
            a.wait_vm_for(vset(buf(s, k), 4))
            a.wait_lg_for(vset(FB + 16 * k, 16))
            for n in range(4): mfma32(a, acc + 4 * n, FB + 16 * k + 4 * n, buf(s, k), "0" if k == 0 else None)
            if s + 2 < 4: hload(a, buf(s, k), vl, 68, s + 2, k)
        a("s_waitcnt lgkmcnt(0)")
        for n in range(4): a("ds_write_b128 v%d, %s offset:%d" % (t, vr(acc + 4 * n, 4), s * 16384 + n * 1024))
    stamp(a, 6)
    a.mark("chain_end")
    a("s_branch L_FIN")

def p2_C():
    a = Asm("P2C")
    a("L_P2C:")
    vl = 1; t = 2; acc = 40; rs = 32
    a("s_waitcnt vmcnt(0)")
    for j in range(4): pf_read(a, j, j)
    for i in range(4): a("v_add_u32 v%d, 0x10000, v%d" % (12 + i, 12 + i))
    pf_read(a, 4, 0)
    for i in range(4): a("v_subrev_u32 v%d, 0x10000, v%d" % (12 + i, 12 + i))
    a("v_lshlrev_b32 v%d, 4, v0" % vl)
    a("s_mul_i32 s23, s60, 5")
    p2_hbase(a, 68, 23, 36)
    a("s_lshl_b32 s23, s60, 2")
    a("s_waitcnt lgkmcnt(0)")
    for j in range(4): pf_dma(a, SWO, 23, j, j, "R2")
    resid_load(a, VX, VO)
    a("v_and_b32 v%d, 15, v0\nv_lshlrev_b32 v%d, 2, v%d" % (t, t, t))
    a("s_and_b32 s64, s58, 1\ns_lshl_b32 s64, s64, 8\nv_add_u32 v%d, s64, v%d" % (t, t))
    for s in range(4): a("ds_read_b32 v%d, v%d offset:%d" % (rs + 2 * s, t, SM_RSTD + 64 * s))
    hflag_setup(a, 3)
    a("v_add_u32 v%d, s21, v%d" % (t, vl))
    flag_poll(a, 3, 69, 4, "hi", 67)
    stamp(a, 5)
    seq = [(s, k) for s in range(4) for k in range(5)]
    bufs = [16, 20, 24, 28] + [FB + 80 + 4 * i for i in range(16)]
    NB = 12
    buf = lambda i: bufs[i % NB]
    for i in range(NB): hload(a, buf(i), vl, 68, *seq[i])
    for i, (s, k) in enumerate(seq):
        a.wait_vm_for(vset(buf(i), 4))
        a.wait_lg_for(vset(FB + 16 * k, 16))
        for n in range(4): mfma32(a, acc + 16 * s + 4 * n, FB + 16 * k + 4 * n, buf(i), "0" if k == 0 else None)
        if i + NB < len(seq): hload(a, buf(i), vl, 68, *seq[i + NB])
    for j in range(4): pf_read(a, 5 + j, j)
    p2_hbase(a, 68, 23, 56)
    a("s_lshl_b32 s64, s60, 3\ns_lshl_b32 s67, 0xff, s64")
    for s in range(4):
        a.wait_lg_for(vset(rs + 2 * s))
        for i in range(0, 16, 2):
            a("v_pk_mul_f32 %s, %s, %s op_sel_hi:[1,0]" % (vr(acc + 16 * s + i, 2), vr(acc + 16 * s + i, 2), vr(rs + 2 * s, 2)))
    flag_poll(a, 3, 69, 4, "lo", 67)
    stamp(a, 6)
    ob = lambda s, k: FB + 16 * s + 4 * k
    for s in range(4):
        for k in range(4): hload(a, ob(s, k), vl, 68, s, k)
    a("s_waitcnt lgkmcnt(0)")
    for s in range(4):
        for k in range(4):
            a.wait_vm_for(vset(ob(s, k), 4))
            for n in range(4): mfma32(a, acc + 16 * s + 4 * n, FB + 16 * (5 + k) + 4 * n, ob(s, k))
        if s > 0:
            for n in range(4): a("ds_write_b128 v%d, %s offset:%d" % (t, vr(acc + 16 * (s - 1) + 4 * n, 4), (s - 1) * 16384 + n * 1024))
    for n in range(4): a("ds_write_b128 v%d, %s offset:%d" % (t, vr(acc + 48 + 4 * n, 4), 3 * 16384 + n * 1024))
    return a

def c_entry():
    a = Asm("CE")
    a("L_C:")
    a("s_or_b32 s64, s2, s3\ns_cmp_lg_u32 s64, 0\ns_cbranch_scc1 L_C1")
    a("s_memrealtime s[64:65]")
    a("s_waitcnt lgkmcnt(0)")
    a("s_or_b32 s64, s64, 1")
    a("v_mov_b32 v4, s64\nv_mov_b32 v5, 0")
    a("s_mov_b64 exec, 1")
    a("buffer_store_dword v4, v5, %s, 0 offen sc1" % SDBG)
    a("s_mov_b64 exec, -1")
    a("L_C1:")
    stamp(a, 0)
    a("""
    v_lshrrev_b32 v12, 5, v0
    s_lshl_b32 s64, s56, 7
    s_lshl_b32 s65, s57, 3
    s_add_u32 s64, s64, s65
    s_lshl_b32 s65, s60, 1
    s_add_u32 s64, s64, s65
    v_add_u32 v12, s64, v12
    v_lshlrev_b32 v12, 10, v12
    v_and_b32 v13, 31, v0
    v_lshl_add_u32 v12, v13, 4, v12
    s_waitcnt lgkmcnt(0)
    """)
    a("buffer_load_dwordx4 %s, v12, %s, 0 offen" % (vr(XR, 4), SX))
    a("buffer_load_dwordx4 %s, v12, %s, 0 offen offset:512" % (vr(XR + 4, 4), SX))
    a("s_cmp_ge_u32 s57, 8\ns_cbranch_scc1 L_MLP_C")
    return a

def mlp_C():
    a = Asm("MC")
    a("L_MLP_C:")
    ACC = 16; X = (144, 160); W = (176, 204); Z = 232
    acc = lambda mt, p: ACC + 4 * (p * 4 + mt)
    warm(a, "ML", 4)
    a("s_lshr_b32 s16, s60, 1\ns_and_b32 s17, s60, 1")
    a("s_lshl_b32 s64, s16, 13\ns_add_u32 s64, s64, %d" % RB0)
    x_addr(a, 1, 12, "s64")
    w_base0(a, 12, 13)
    a("""
    s_lshl_b32 s64, s17, 14
    s_add_u32 s64, s64, 20480
    s_lshl_b32 s65, s17, 6
    s_add_u32 s65, s65, 28672
    v_xor_b32 v3, s64, v12
    v_xor_b32 v4, 32, v3
    v_xor_b32 v5, 64, v3
    v_xor_b32 v6, 0x60, v3
    v_xor_b32 v7, s65, v12
    v_xor_b32 v8, 32, v7
    v_lshrrev_b32 v13, 4, v0
    v_lshlrev_b32 v9, 9, v13
    v_lshlrev_b32 v10, 4, v13
    v_and_b32 v13, 1, v13
    v_xor_b32 v13, s17, v13
    v_lshl_or_b32 v9, v13, 5, v9
    v_bfe_u32 v13, v0, 2, 2
    v_lshl_or_b32 v9, v13, 6, v9
    v_and_b32 v13, 3, v0
    v_lshl_or_b32 v9, v13, 3, v9
    v_add_u32 v9, {HP}, v9
    s_lshl_b32 s64, s17, 6
    v_add_u32 v12, s64, v10
    v_add_u32 v11, s64, v12
    s_lshl_b32 s64, s17, 9
    v_add_u32 v10, s64, v10
    v_and_b32 v13, 15, v0
    v_lshlrev_b32 v13, 2, v13
    s_lshl_b32 s64, s16, 8
    v_add_u32 v13, s64, v13
    """.format(HP=40960 + RB0))
    zero_regs(a, ACC, 112, Z)
    a("""
    s_sub_u32 s64, s57, 8
    s_and_b32 s65, s64, 1
    s_mul_i32 s64, s64, 7
    s_mul_i32 s68, s56, {mb}
    s_add_u32 s68, s68, s64
    s_mul_i32 s64, s16, {wmo}
    s_add_u32 s68, s68, s64
    s_lshl_b32 s68, s68, 10
    s_add_u32 s68, s68, {H}
    s_lshl_b32 s64, s65, 10
    s_add_u32 s12, s68, s64
    s_lshl_b32 s64, s17, 10
    s_add_u32 s13, s12, s64
    s_add_u32 s13, s13, 2048
    s_lshl_b32 s64, s17, 12
    s_add_u32 s12, s12, s64
    s_cmp_eq_u32 s65, 0
    s_cselect_b32 s64, 6144, 0
    s_add_u32 s14, s68, s64
    s_lshl_b32 s64, s17, 3
    s_add_u32 s14, s14, s64
    s_add_u32 s15, s12, 1024
    v_lshlrev_b32 v14, 4, v0
    """.format(mb=8 * 72, wmo=4 * 72, H=H_OFF))
    warm(a, "M1", 4)
    stamp(a, 10)
    a("s_call_b64 s[8:9], L_STATS")
    stamp(a, 1)
    a("s_barrier")
    stamp(a, 2)
    def reads(ks, st):
        r = []
        for mt in range(4):
            r.append("ds_read_b128 %s, v%d offset:%d" % (vr(X[st] + 4 * mt, 4), 1 + ks, mt * 2048))
        for p in range(7):
            for h in range(2):
                off = (ks * 4096 + h * 512 if p < 6 else ks * 2048 + h * 256)
                r.append("ds_read_b64_tr_b16 %s, v%d offset:%d" % (vr(W[st] + 4 * p + 2 * h, 2), 3 + p, off))
        return r
    def mfmas(st):
        m = []
        for p in range(7):
            for mt in range(4):
                m.append(((lambda p=p, mt=mt: mfma32(a, acc(mt, p), W[st] + 4 * p, X[st] + 4 * mt)), vset(W[st] + 4 * p, 4) | vset(X[st] + 4 * mt, 4)))
        return m
    a.mark("chain ML")
    gemm_loop(a, "MC", reads, mfmas, range(1, 10))
    a.mark("chain_end")
    a.mark("chain ME")
    MEAN = 144; CS = 176
    for mt in range(4): a("ds_read_b32 v%d, v13 offset:%d" % (MEAN + 2 * mt, SM_MEAN + 64 * mt))
    for p in range(7):
        ad, off = (10, 64 * p) if p < 4 else (11, 256 + 64 * (p - 4)) if p < 6 else (12, 768)
        a("ds_read_b128 %s, v%d offset:%d" % (vr(CS + 4 * p, 4), ad, SM_CS + off))
    a("v_mov_b32 v152, 0")
    a("ds_read_b64 v[152:153], v152 offset:%d" % SM_EP)
    tq = [128, 132, 136, 140, 232, 236, 240, 244]; ti = [0]
    ops = []
    def group(grp, sb):
        for mt in range(4):
            q = tq[ti[0] % len(tq)]
            ti[0] += 1
            for i, p in enumerate(grp):
                A = acc(mt, p)
                for h in (0, 2):
                    def f(A=A, h=h, p=p, mt=mt):
                        a.wait_lg_for(vset(CS + 4 * p, 4) | vset(MEAN + 2 * mt))
                        a("v_pk_fma_f32 %s, %s, %s, %s op_sel_hi:[1,0,1] neg_lo:[0,1,0] neg_hi:[0,1,0]" % (vr(A + h, 2), vr(CS + 4 * p + h, 2), vr(MEAN + 2 * mt, 2), vr(A + h, 2)))
                    ops.append(f)
            for i, p in enumerate(grp):
                A = acc(mt, p)
                for h in (0, 1): ops.append(lambda A=A, h=h, i=i, q=q: a("v_cvt_pk_bf16_f32 v%d, v%d, v%d" % (q + 2 * i + h, A + 2 * h, A + 2 * h + 1)))
            for i in range(2 * len(grp)): ops.append(lambda q=q, i=i: a("v_pk_max_i16 v%d, v%d, 0" % (q + i, q + i)))
            def st(q=q, mt=mt):
                a("s_add_u32 s64, s%d, %d" % (sb, mt * 73728))
                if len(grp) == 2: a("buffer_store_dwordx4 %s, v14, %s, s64 offen" % (vr(q, 4), SWS))
                else: a("buffer_store_dwordx2 %s, v14, %s, s64 offen" % (vr(q, 2), SWS))
            ops.append(st)
    group((0, 1), 12); group((2, 3), 15); group((4, 5), 13); group((6,), 14)
    for i, (fn, _) in enumerate(mfmas(1)):
        fn()
        if i >= 10:
            for k in range(O.tailv): ops.pop(0)()
    stamp(a, 3)
    for o in ops: o()
    a.wait_lg_for(vset(152, 2))
    a("v_readfirstlane_b32 s62, v152\nv_readfirstlane_b32 s63, v153")
    pf_addr(a, CBUF)
    a("s_mul_i32 s23, s60, 5")
    for j in range(O.early): pf_dma(a, SW2, 23, 36 + j, j, "R1")
    a("s_waitcnt vmcnt(%d)" % (4 * O.early))
    flag_publish(a, 1)
    stamp(a, 4)
    for j in range(O.early, 5): pf_dma(a, SW2, 23, 36 + j, j, "R1")
    a.mark("chain_end")
    if O.stop == "p1":
        stamps_out(a, 110, 111)
        a("s_endpgm"); return a
    a("s_branch L_P2C")
    return a

def att_C():
    a = Asm("AC")
    a("L_ATT_C:")
    AK = 16; X = (48, 80); AV = 112; AQ = 144; W = (176, 188); CSK = 200; CSV = 204; CSQ = 208; ONES = 212; WP = 216
    warm(a, "AL", 4)
    a("""
    s_lshl_b32 s16, s57, 2
    s_add_u32 s16, s16, s60
    v_and_b32 v12, 15, v0
    v_lshlrev_b32 v14, 2, v12
    v_lshlrev_b32 v12, 1, v12
    v_lshrrev_b32 v13, 4, v0
    v_lshl_or_b32 v12, v13, 7, v12
    s_lshl_b32 s64, s16, 9
    s_waitcnt lgkmcnt(0)
    buffer_load_ushort v{w0}, v12, {SP}, s64 offen
    buffer_load_ushort v{w2}, v12, {SP}, s64 offen offset:32
    buffer_load_ushort v{w1}, v12, {SP}, s64 offen offset:64
    buffer_load_ushort v{w3}, v12, {SP}, s64 offen offset:96
    """.format(w0=WP, w1=WP + 1, w2=WP + 2, w3=WP + 3, SP=SPHI))
    x_addr(a, 1, 12, str(RB0))
    w_base0(a, 12, 13)
    a("s_lshl_b32 s64, s60, 5\ns_add_u32 s64, s64, 20480\nv_xor_b32 v3, s64, v12")
    zero_regs(a, AK, 32, ONES)
    for r in (AV, AV + 16, AQ, AQ + 16): a("v_mfma_f32_32x32x16_bf16 %s, %s, %s, 0" % (vr(r, 16), vr(ONES, 4), vr(ONES, 4)))
    a("""
    v_and_b32 v13, 15, v0
    v_lshlrev_b32 v6, 6, v13
    v_bfe_u32 v12, v0, 2, 1
    v_lshlrev_b32 v12, 1, v12
    v_bfe_u32 v13, v0, 3, 1
    v_or_b32 v12, v12, v13
    v_lshrrev_b32 v13, 4, v0
    v_xor_b32 v12, v12, v13
    v_lshl_or_b32 v6, v12, 4, v6
    s_lshl_b32 s64, s60, 12
    s_add_u32 s64, s64, {CB}
    v_add_u32 v6, s64, v6
    v_lshlrev_b32 v7, 4, v13
    s_lshl_b32 s65, s60, 6
    v_add_u32 v8, s65, v7
    v_add_u32 v11, s65, v14
    v_lshrrev_b32 v12, 2, v0
    v_lshlrev_b32 v9, 6, v12
    v_bfe_u32 v12, v0, 4, 1
    v_lshlrev_b32 v12, 1, v12
    v_lshrrev_b32 v13, 5, v0
    v_or_b32 v12, v12, v13
    v_and_b32 v13, 3, v0
    v_xor_b32 v12, v12, v13
    v_lshl_or_b32 v9, v12, 4, v9
    v_add_u32 v9, s64, v9
    v_lshlrev_b32 v10, 4, v0
    s_lshl_b32 s17, s16, 15
    s_add_u32 s17, s17, {KVG}
    s_lshl_b32 s64, s56, 11
    s_add_u32 s18, s17, s64
    """.format(CB=CBUF, KVG=KVG_OFF))
    for i in range(4): a("v_mov_b32 v%d, 0x3f803f80" % (ONES + i))
    warm(a, "A1", 4)
    stamp(a, 13)
    a("s_call_b64 s[8:9], L_STATS")
    a.vm = []
    a("v_lshl_or_b32 v%d, v%d, 16, v%d\nv_lshl_or_b32 v%d, v%d, 16, v%d" % (WP, WP + 2, WP, WP + 1, WP + 3, WP + 1))
    stamp(a, 1)
    a("s_barrier")
    stamp(a, 2)
    WQ, WK, WV = 0, 4, 8
    def reads(ks, st):
        r = []
        for p in (1, 2, 0):
            for h in range(2):
                r.append("ds_read_b64_tr_b16 %s, v3 offset:%d" % (vr(W[st] + 4 * p + 2 * h, 2), p * 8192 + ks * 4096 + h * 512))
        for mt in range(8):
            r.append("ds_read_b128 %s, v%d offset:%d" % (vr(X[st] + 4 * mt, 4), 1 + ks, mt * 2048))
        return r
    def mk(st):
        w = W[st]
        k = [((lambda mt=mt: mfma32(a, AK + 4 * mt, w + WK, X[st] + 4 * mt)), vset(w + WK, 4) | vset(X[st] + 4 * mt, 4)) for mt in range(8)]
        v = [((lambda mt=mt: mfma32(a, AV + 4 * mt, X[st] + 4 * mt, w + WV)), vset(w + WV, 4) | vset(X[st] + 4 * mt, 4)) for mt in range(8)]
        q = [((lambda mt=mt: mfma32(a, AQ + 4 * mt, w + WQ, X[st] + 4 * mt)), vset(w + WQ, 4) | vset(X[st] + 4 * mt, 4)) for mt in range(8)]
        return k, v, q
    def mfmas(st):
        k, v, q = mk(st)
        m = []
        for mt in range(8): m += [k[mt], v[mt], q[mt]]
        return m
    a.mark("chain AL")
    gemm_loop(a, "AC", reads, mfmas, (1, 2, 3))
    a.mark("chain_end")
    a.mark("chain AE")
    MEAN = 48; KB = 64; PT = 220
    a("ds_read_b128 %s, v8 offset:%d" % (vr(CSK, 4), SM_CS + 256))
    for mt in range(8): a("ds_read_b32 v%d, v14 offset:%d" % (MEAN + 2 * mt, SM_MEAN + 64 * mt))
    a("ds_read_b128 %s, v8 offset:%d" % (vr(CSQ, 4), SM_CS))
    a("ds_read_b32 v%d, v11 offset:%d" % (CSV, SM_CS + 512))
    k, v, q = mk(1)
    for fn, _ in k: fn()
    def fold_ops(A, cs):
        ops = []
        def fold(mt):
            def f0():
                a.wait_lg_for(vset(MEAN + 2 * mt) | vset(cs, 4))
                a("v_pk_fma_f32 %s, %s, %s, %s op_sel_hi:[1,0,1] neg_lo:[0,1,0] neg_hi:[0,1,0]" % (vr(A + 4 * mt, 2), vr(cs, 2), vr(MEAN + 2 * mt, 2), vr(A + 4 * mt, 2)))
            ops.append(f0)
            ops.append(lambda: a("v_pk_fma_f32 %s, %s, %s, %s op_sel_hi:[1,0,1] neg_lo:[0,1,0] neg_hi:[0,1,0]" % (vr(A + 4 * mt + 2, 2), vr(cs + 2, 2), vr(MEAN + 2 * mt, 2), vr(A + 4 * mt + 2, 2))))
            for h in (0, 1): ops.append(lambda h=h: a("v_cvt_pk_bf16_f32 v%d, v%d, v%d" % (KB + 2 * mt + h, A + 4 * mt + 2 * h, A + 4 * mt + 2 * h + 1)))
        pw = lambda mt: (lambda: a("ds_write_b128 v6, %s offset:%d" % (vr(PT + 4 * mt, 4), (mt >> 2) * 16384 + (mt & 3) * 1024)))
        for mt in range(8):
            fold(mt)
            if mt >= 1: ops.append(lambda mt=mt: mfma16(a, PT + 4 * (mt - 1), WP, KB + 2 * (mt - 1), "0"))
            if mt >= 3: ops.append(pw(mt - 3))
        ops.append(lambda: mfma16(a, PT + 28, WP, KB + 14, "0"))
        for mt in range(5, 8): ops.append(pw(mt))
        return ops
    ops = fold_ops(AK, CSK)
    rest = v + q
    for fn, _ in rest:
        fn()
        for i in range(3):
            if ops: ops.pop(0)()
    for o in ops: o()
    read_sync(a, 12)
    stamp(a, 3)
    a("s_call_b64 s[8:9], L_SMX")
    a.lg = []
    VF = 80; MR = 16
    for mt in range(8):
        a("ds_read_b128 %s, v7 offset:%d" % (vr(MR + 8 * mt, 4), SM_MEAN + 64 * mt))
        a("ds_read_b128 %s, v7 offset:%d" % (vr(MR + 8 * mt + 4, 4), SM_RSTD + 64 * mt))
    for mt in range(8):
        b = MR + 8 * mt; A = AV + 4 * mt
        a.wait_lg_for(vset(b, 8))
        for h in (0, 2):
            a("v_pk_fma_f32 %s, %s, %s, %s op_sel_hi:[1,0,1] neg_lo:[0,1,0] neg_hi:[0,1,0]" % (vr(A + h, 2), vr(b + h, 2), vr(CSV, 2), vr(A + h, 2)))
        for h in (0, 2):
            a("v_pk_mul_f32 %s, %s, %s" % (vr(A + h, 2), vr(A + h, 2), vr(b + 4 + h, 2)))
        for h in (0, 1): a("v_cvt_pk_bf16_f32 v%d, v%d, v%d" % (VF + 2 * mt + h, A + 2 * h, A + 2 * h + 1))
    a("s_waitcnt lgkmcnt(0)\ns_barrier")
    stamp(a, 9)
    PF = 16; KV = 96
    for kk in range(4):
        for hf in range(2):
            for h in range(2):
                a("ds_read_b64_tr_b16 %s, v9 offset:%d" % (vr(PF + 8 * kk + 4 * hf + 2 * h, 2), (kk >> 1) * 16384 + (kk & 1) * 2048 + h * 1024 + 8 * hf))
    for mt in range(8): a("ds_read_b32 v%d, v14 offset:%d" % (MEAN + 2 * mt, SM_MEAN + 64 * mt))
    for kk in range(4):
        for hf in range(2):
            a.wait_lg_for(vset(PF + 8 * kk + 4 * hf, 4))
            mfma32(a, KV + 4 * hf, PF + 8 * kk + 4 * hf, VF + 4 * kk, "0" if kk == 0 else None)
            mfma32(a, KV + 8 + 4 * hf, ONES, PF + 8 * kk + 4 * hf, "0" if kk == 0 else None)
    G0 = 112
    a("v_mov_b32 v%d, s62\nv_mov_b32 v%d, s62" % (G0 + 3, G0 + 7))
    ops = fold_ops(AQ, CSQ)
    for i in range(6): ops.pop(0)()
    for hf in range(2):
        for i in range(2): a("v_cvt_pk_bf16_f32 v%d, v%d, v%d" % (G0 + 4 * hf + i, KV + 4 * hf + 2 * i, KV + 4 * hf + 2 * i + 1))
        a("v_mov_b32 v%d, v%d" % (G0 + 4 * hf + 2, KV + 8 + 4 * hf))
        a("buffer_store_dwordx4 %s, v10, %s, s18 offen offset:%d sc1" % (vr(G0 + 4 * hf, 4), SWS, 1024 * hf))
    stamp(a, 4)
    for o in ops: o()
    a("v_mov_b32 v7, v6")
    pf_addr(a, CBUF)
    a("s_mul_i32 s23, s60, 5")
    for j in (2, 3, 4): pf_dma(a, SW2, 23, 36 + j, j, "R1")
    a("s_call_b64 s[8:9], L_SMX")
    a.lg = []
    a("""
    v_and_b32 v1, 15, v0
    v_lshrrev_b32 v2, 4, v0
    v_lshlrev_b32 v2, 2, v2
    v_sub_u32 v1, v1, v2
    v_mov_b32 v2, 0x3f80
    v_mov_b32 v3, 0x3f800000
    v_cmp_eq_u32 vcc, 0, v1
    v_cndmask_b32 v88, 0, v2, vcc
    v_cmp_eq_u32 vcc, 1, v1
    v_cndmask_b32 v88, v88, v3, vcc
    v_cmp_eq_u32 vcc, 2, v1
    v_cndmask_b32 v89, 0, v2, vcc
    v_cmp_eq_u32 vcc, 3, v1
    v_cndmask_b32 v89, v89, v3, vcc
    v_mov_b32 v90, 0x3e800000
    v_and_b32 v1, 31, v0
    v_lshlrev_b32 v1, 10, v1
    v_cmp_gt_u32 vcc, 32, v0
    v_mov_b32 v2, 12
    v_mov_b32 v3, 1020
    v_cndmask_b32 v2, v2, v3, vcc
    v_add_u32 v1, v1, v2
    v_lshlrev_b32 v6, 4, v0
    s_mul_i32 s19, s56, {mb}
    s_lshr_b32 s64, s16, 1
    s_add_u32 s19, s19, s64
    s_add_u32 s19, s19, 56
    s_lshl_b32 s19, s19, 10
    s_add_u32 s19, s19, {H}
    s_and_b32 s64, s60, 1
    s_lshl_b32 s64, s64, 3
    s_add_u32 s19, s19, s64
    """.format(mb=8 * 72, H=H_OFF))
    a("s_waitcnt lgkmcnt(0)\ns_barrier")
    PQ = 48
    for mt in range(8): a("ds_read_b128 %s, v7 offset:%d" % (vr(PQ + 4 * mt, 4), (mt >> 2) * 16384 + (mt & 3) * 1024))
    a("s_waitcnt lgkmcnt(0)")
    for j in (0, 1): pf_dma(a, SW2, 23, 36 + j, j, "R1")
    stamp(a, 10)
    KS = 96; ZS = 92; TM = 94
    R = a.label("GR"); L = a.label("GP"); D = a.label("GPD"); DD = a.label("GDD")
    a("s_mov_b32 s70, %d" % O.spin)
    a(L + ":")
    a("buffer_load_dword v2, v1, %s, s17 offen sc1" % SWS)
    a("s_waitcnt vmcnt(0)")
    a("v_cmp_eq_u32 vcc, s62, v2")
    a("s_cmp_eq_u64 vcc, -1")
    a("s_cbranch_scc1 %s" % D)
    spin_tail(a, L, D, O.psleep)
    a(D + ":")
    stamp(a, 11)
    for j in range(32):
        if j % 4 == 0: a("s_add_u32 s64, s17, %d" % (j * 1024))
        a("buffer_load_dwordx4 %s, v6, %s, s64 offen offset:%d sc1" % (vr(G0 + 4 * j, 4), SWS, (j & 3) * 1024))
    for j in range(0, 32, 2):
        g = G0 + 4 * j
        a.wait_vm_for(vset(g, 8))
        mfma16(a, KS, 88, g, "0" if j == 0 else None)
        mfma16(a, KS + 4, 88, g + 4, "0" if j == 0 else None)
        if j == 0:
            a("v_mov_b32 v%d, v%d\nv_mov_b32 v%d, v%d" % (ZS, g + 2, ZS + 1, g + 6))
            a("v_max_u32 v%d, v%d, v%d\nv_min_u32 v%d, v%d, v%d" % (TM, g + 3, g + 7, TM + 1, g + 3, g + 7))
        else:
            a("v_add_f32 v%d, v%d, v%d\nv_add_f32 v%d, v%d, v%d" % (ZS, ZS, g + 2, ZS + 1, ZS + 1, g + 6))
            a("v_max3_u32 v%d, v%d, v%d, v%d\nv_min3_u32 v%d, v%d, v%d, v%d" % (TM, TM, g + 3, g + 7, TM + 1, TM + 1, g + 3, g + 7))
    a("v_cmp_eq_u32 vcc, s62, v%d\ns_mov_b64 s[64:65], vcc" % TM)
    a("v_cmp_eq_u32 vcc, s62, v%d\ns_and_b64 s[64:65], s[64:65], vcc" % (TM + 1))
    ZD = 104
    a("v_mfma_f32_16x16x4_f32 %s, v%d, v90, 0" % (vr(ZD, 4), ZS))
    a("v_mfma_f32_16x16x4_f32 %s, v%d, v90, 0" % (vr(ZD + 4, 4), ZS + 1))
    a("s_cmp_eq_u64 s[64:65], -1")
    a("s_cbranch_scc1 %s" % DD)
    a("s_sub_u32 s70, s70, 1")
    a("s_cbranch_scc0 %s" % L)
    a(DD + ":")
    ZA = 80; KA = 84
    for i in range(4): a("v_cvt_pk_bf16_f32 v%d, v%d, v%d" % (KA + i, KS + 2 * i, KS + 2 * i + 1))
    for i in range(4): a("v_cvt_pk_bf16_f32 v%d, v%d, v%d" % (ZA + i, ZD + 2 * i, ZD + 2 * i + 1))
    DEN = [96, 100, 104, 108]
    def ofin(mt, Dn):
        N = AK + 4 * mt
        a("v_add_f32 v%d, 0x358637bd, v%d" % (Dn, Dn))
        a("v_rcp_f32 v%d, v%d" % (Dn, Dn))
        for h in (0, 2): a("v_pk_mul_f32 %s, %s, %s op_sel_hi:[1,0]" % (vr(N + h, 2), vr(N + h, 2), vr(Dn, 2)))
        for h in (0, 1): a("v_cvt_pk_bf16_f32 v%d, v%d, v%d" % (N + h, N + 2 * h, N + 2 * h + 1))
        a("s_add_u32 s64, s19, %d" % (mt * 73728))
        a("buffer_store_dwordx2 %s, v6, %s, s64 offen" % (vr(N, 2), SWS))
    for mt in range(8):
        mfma32(a, AK + 4 * mt, KA, PQ + 4 * mt, "0")
        mfma32(a, DEN[mt % 4], ZA, PQ + 4 * mt, "0")
        if mt >= 2: ofin(mt - 2, DEN[(mt - 2) % 4])
    ofin(6, DEN[2]); ofin(7, DEN[3])
    a("s_waitcnt vmcnt(0)")
    flag_publish(a, 1)
    stamp(a, 12)
    a.mark("chain_end")
    if O.stop == "p1":
        stamps_out(a, 110, 111)
        a("s_endpgm")
    return a

def assemble_sizes(text):
    src = "_g2.s"; obj = "_g2.o"
    open(src, "w").write('.amdgcn_target "amdgcn-amd-amdhsa--gfx950"\n.text\n' + text)
    r = subprocess.run(["clang", "-x", "assembler", "-target", "amdgcn-amd-amdhsa", "-mcpu=gfx950", "-c", src, "-o", obj], capture_output=True, text=True)
    if r.returncode: print(r.stderr[:3000]); sys.exit(1)
    d = subprocess.run(["llvm-objdump", "-d", obj], capture_output=True, text=True).stdout
    return [4 * len(m.group(1).split()) for m in re.finditer(r"// [0-9A-F]{12}: ([0-9A-F ]+)\n", d)]

def txt(ins):
    return "".join((i.text + "\n") if i.kind == "label" else ("    " + i.text + "\n") for i in ins)

def main():
    smx = softmax_sub(); smx("s_waitcnt lgkmcnt(0)\ns_setpc_b64 s[8:9]")
    p2c = p2_C(); fin = final_sub()
    e = entry(); ce = c_entry(); ac = att_C(); mc = mlp_C()
    def ch(x, name):
        m0 = Asm(); m0.mark("chain " + name); m1 = Asm(); m1.mark("chain_end")
        return m0.ins + x.ins + m1.ins
    ins = e.ins + ch(smx, "SMX") + ce.ins + mc.ins + ac.ins
    ins = e.ins + ch(smx, "SMX") + mc.ins + stats_sub().ins + ce.ins + ac.ins + ch(p2c, "P2C") + ch(fin, "FIN")
    tail = Asm(); tail("s_endpgm\nL_WRET:\ns_setpc_b64 s[10:11]\nL_END:"); ins += tail.ins
    lab0 = "".join("L_W_%s_%d:\n" % (c, k) for c, n in CHAIN_SPLIT.items() for k in range(n))
    sizes = assemble_sizes(txt(ins).replace("@CODESZ@", "0x7000") + lab0)
    out = []; stubs = {}; cur = None; since = 0; nostub = 0; si = 0
    for c in ins:
        if c.kind == "label":
            if c.text.startswith("; @chain_end"): cur = None
            elif c.text.startswith("; @chain "): cur = c.text.split()[2]; since = 1 << 20; stubs.setdefault(cur, [])
            elif c.text.startswith("; @nostub_begin"): nostub += 1
            elif c.text.startswith("; @nostub_end"): nostub -= 1
            out.append(c); continue
        if O.warm and cur and not nostub and since + sizes[si] > O.stride:
            s = Ins("s_cbranch_execz X"); stubs[cur].append(s); out.append(s); since = 4
        out.append(c); since += sizes[si]; si += 1
    assert si == len(sizes), (si, len(sizes))
    def split(names, n):
        flat = [s for c in names for s in stubs.get(c, [])]
        return [flat[i * len(flat) // n:(i + 1) * len(flat) // n] for i in range(n)]
    seqs = {"ML": stubs.get("ML", []), "AL": stubs.get("AL", [])}
    seqs["A1"], = split(["STA", "AE", "SMX"], 1)
    seqs["M1"], = split(["ME"], 1)
    seqs["C3"], seqs["C4"], seqs["C5"] = split(["P2C", "FIN", "P2L"], 3)
    labels = {}
    extra = ""
    nid = [0]
    for cname, n in CHAIN_SPLIT.items():
        seq = seqs[cname]
        for k in range(n):
            sub = seq[k * len(seq) // n:(k + 1) * len(seq) // n]
            if not sub:
                extra += "L_W_%s_%d" % (cname, k) + ":\n"; continue
            labels.setdefault(id(sub[0]), []).append("L_W_%s_%d" % (cname, k))
            for x, y in zip(sub[:-1], sub[1:]):
                nid[0] += 1; l = "L_WS_%d" % nid[0]
                labels.setdefault(id(y), []).append(l); x.text = "s_cbranch_execz " + l
            sub[-1].text = "s_cbranch_execz L_WRET"
    body = ""
    for c in out:
        for l in labels.get(id(c), []): body += l + ":\n"
        if c.text == "L_WRET:": body += extra
        body += (c.text + "\n") if c.kind == "label" else ("    " + c.text + "\n")
    total = sum(assemble_sizes(body.replace("@CODESZ@", "0x7000") + "s_endpgm\n"))
    body = body.replace("@CODESZ@", "0x%x" % ((total - 64) & ~3))
    print("code bytes", total, "stubs", {k: len(v) for k, v in stubs.items()})
    open(sys.argv[1], "w").write(wrap(body, 256, 512, LDS_BYTES))

main()
```
